```python
import torch

def _softmax(x, axis=-1):
    return torch.softmax(x, dim=axis)
def _gelu(x):
    return torch.nn.functional.gelu(x, approximate="tanh")
def _silu(x):
    return torch.nn.functional.silu(x)
def _sigmoid(x):
    return torch.sigmoid(x)
def _layernorm(x, axis=-1, eps=1e-5):
    m = x.mean(dim=axis, keepdim=True)
    v = x.var(dim=axis, keepdim=True, unbiased=False)
    return (x - m) / torch.sqrt(v + eps)
def _scatter_add(tgt, idx, src, axis=0):
    return tgt.clone().index_add_(axis, idx, src)
def _segment_sum(src, seg, n):
    out = torch.zeros((n,) + src.shape[1:], dtype=src.dtype)
    return out.index_add_(0, seg, src)
def _pad(x, pw):
    flat = tuple(v for pair in reversed(pw) for v in pair)
    return torch.nn.functional.pad(x, flat)

kernel_name = 'gated_mix__mha_block__swiglu_ffn__prompt'

def setup_inputs():

    _w = (lambda a: (lambda t: t.to(torch.bfloat16) if t.is_floating_point() else t)(torch.as_tensor(a)))
    def _A_setup():
        B, S, D, H = 1, 2048, 512, 32
        return {
            "x": _w((lambda *s: torch.randn(*s, dtype=torch.bfloat16) * 0.05)(B, S, D)),
            "wqkv": _w((lambda *s: torch.randn(*s, dtype=torch.bfloat16) * 0.8)(D, 3 * D)),
            "wo": _w((lambda *s: torch.randn(*s, dtype=torch.bfloat16) * 0.05)(D, D)),
        }
    _A_in = _A_setup()

    def _B_setup():
        B, S, D, F = 1, 2048, 512, 1376
        return {
            "x": _w((lambda *s: torch.randn(*s, dtype=torch.bfloat16) * 0.05)(B, S, D)),
            "w_gate": _w((lambda *s: torch.randn(*s, dtype=torch.bfloat16) * 0.1)(D, F)),
            "w_up": _w((lambda *s: torch.randn(*s, dtype=torch.bfloat16) * 0.1)(D, F)),
            "w_down": _w((lambda *s: torch.randn(*s, dtype=torch.bfloat16) * 0.1)(F, D)),
        }
    _B_in = _B_setup()

    return {
        "A_x": _A_in["x"],
        "A_wqkv": _A_in["wqkv"],
        "A_wo": _A_in["wo"],
        "B_x": _B_in["x"],
        "B_w_gate": _B_in["w_gate"],
        "B_w_up": _B_in["w_up"],
        "B_w_down": _B_in["w_down"],
        "gate_w": _w((lambda *s: torch.randn(*s, dtype=torch.bfloat16) * 0.05)(512) * 16.0),
    }

def reference(A_x, A_wqkv, A_wo, B_x, B_w_gate, B_w_up, B_w_down, gate_w):
    def _A_ref(x, wqkv, wo):
        B, S, D = x.shape
        H = 32
        Dh = D // H
        qkv = (lambda x, *d: x.permute(*d))((x @ wqkv).reshape(B, S, 3, H, Dh), 2, 0, 3, 1, 4)
        q, k, v = qkv[0], qkv[1], qkv[2]
        scores = torch.einsum("bhqd,bhkd->bhqk", q, k) * (Dh ** -0.5)
        p = _softmax(scores, axis=-1)
        o = torch.einsum("bhqk,bhkd->bhqd", p, v)
        return (lambda x, *d: x.permute(*d))(o, 0, 2, 1, 3).reshape(B, S, D) @ wo

    def _B_ref(x, w_gate, w_up, w_down):
        g = _silu(x @ w_gate)
        u = x @ w_up
        return (g * u) @ w_down

    x = A_x
    g = _sigmoid((x * gate_w).sum(-1, keepdims=True))
    a = _A_ref(x, A_wqkv, A_wo)
    b = _B_ref(x, B_w_gate, B_w_up, B_w_down)
    return g * a + (1 - g) * b
```

```python
class Asm:
    def __init__(self):
        self.lines = []
        self._uid = 0

    def __call__(self, s=""):
        for l in s.split("\n"):
            self.lines.append("    " + l.strip() if l.strip() else "")

    def label(self, l):
        self.lines.append(l + ":")

    def c(self, s):
        self.lines.append("    ; " + s)

    def raw(self, s):
        self.lines.append(s)

    def uid(self, p="L"):
        self._uid += 1
        return f"{p}_{self._uid}"

    def text(self):
        return "\n".join(self.lines) + "\n"


def vr(a, n=1):
    return f"v{a}" if n == 1 else f"v[{a}:{a+n-1}]"


def sr(a, n=1):
    return f"s{a}" if n == 1 else f"s[{a}:{a+n-1}]"


class VmTracker:
    def __init__(self):
        self.ops = []

    def issue(self, tag, n=1):
        self.ops += [tag] * n

    def wait_for(self, tags):
        last = -1
        for i, t in enumerate(self.ops):
            if t in tags:
                last = i
        n = len(self.ops) - 1 - last
        assert n <= 63
        return n


KD = """.section .rodata,"a"
.p2align 6
.amdhsa_kernel {name}
  .amdhsa_next_free_vgpr {vgpr}
  .amdhsa_next_free_sgpr {sgpr}
  .amdhsa_accum_offset {accum}
  .amdhsa_group_segment_fixed_size 0
  .amdhsa_kernarg_size 88
  .amdhsa_user_sgpr_count 2
  .amdhsa_user_sgpr_kernarg_segment_ptr 1
  .amdhsa_system_sgpr_workgroup_id_x 1
  .amdhsa_float_denorm_mode_32 0
  .amdhsa_ieee_mode 0
  .amdhsa_dx10_clamp 1
.end_amdhsa_kernel
"""


def kernel_header(name):
    return f""".text
.globl {name}
.p2align 8
.type {name},@function
{name}:
"""
```

```python
from asmlib import *

QF = 0
KF = 2 << 20
VF = 4 << 20
OF = 6 << 20
GV = 8 << 20
HF = 9 << 20
HSTEPS = 88
WS_BYTES = 16 << 20
QSCALE = 0x3EB8AA3B

S_W = 3
P_AX, P_WQKV, P_WO, P_BX, P_WG, P_WU, P_WD, P_GW = 16, 18, 20, 22, 24, 26, 28, 30
P_OUT, P_DBG, P_WS = 32, 34, 36
SRD0, SRD1, SRD2, SRD3 = 40, 44, 48, 52


def common_prologue(a):
    a("s_load_dwordx16 s[16:31], s[0:1], 0")
    a("s_load_dwordx4 s[32:35], s[0:1], 64")
    a("s_load_dwordx2 s[36:37], s[0:1], 80")
    a("v_lshrrev_b32 v1, 6, v0")
    a("v_and_b32 v0, 63, v0")
    a("s_nop 0")
    a("v_readfirstlane_b32 s3, v1")


def mk_srd(a, srd, ptr, nbytes, off=0):
    if off:
        a(f"s_add_u32 s{srd}, s{ptr}, 0x{off:x}")
        a(f"s_addc_u32 s{srd+1}, s{ptr+1}, 0")
    else:
        a(f"s_mov_b32 s{srd}, s{ptr}")
        a(f"s_mov_b32 s{srd+1}, s{ptr+1}")
    a(f"s_mov_b32 s{srd+2}, 0x{nbytes:x}")
    a(f"s_mov_b32 s{srd+3}, 0x20000")


def dma(a, voff, srd, sbase, soff_imm, lds_sbase, lds_imm, tmp=60, mods=""):
    a(f"s_add_u32 m0, s{lds_sbase}, 0x{lds_imm:x}")
    a(f"s_add_u32 s{tmp}, s{sbase}, 0x{soff_imm:x}")
    a(f"buffer_load_dwordx4 v{voff}, s[{srd}:{srd+3}], s{tmp} offen {mods} lds".replace("  ", " "))


def x_dma_voffset(a, vdst, t0, t1):
    a(f"s_and_b32 s60, s{S_W}, 1")
    a(f"s_lshl_b32 s60, s60, 2")
    a(f"v_lshrrev_b32 v{t0}, 4, v0")
    a(f"v_add_u32 v{t0}, s60, v{t0}")
    a(f"v_and_b32 v{t1}, 7, v0")
    a(f"v_xor_b32 v{t0}, v{t0}, v{t1}")
    a(f"v_lshlrev_b32 v{t0}, 4, v{t0}")
    a(f"v_lshrrev_b32 v{t1}, 3, v0")
    a(f"v_lshlrev_b32 v{t1}, 10, v{t1}")
    a(f"v_add_u32 v{vdst}, v{t0}, v{t1}")


def w256_dma_voffset(a, vdst, rowstride, t0, t1):
    a(f"v_lshrrev_b32 v{t0}, 4, v0")
    a(f"v_bfe_u32 v{t1}, v0, 2, 2")
    a(f"v_xor_b32 v{t1}, v{t1}, v{t0}")
    a(f"v_lshlrev_b32 v{t1}, 6, v{t1}")
    a(f"v_mul_u32_u24 v{t0}, {rowstride}, v{t0}")
    a(f"v_add_u32 v{t0}, v{t0}, v{t1}")
    a(f"v_and_b32 v{t1}, 3, v0")
    a(f"v_lshlrev_b32 v{t1}, 4, v{t1}")
    a(f"v_add_u32 v{vdst}, v{t0}, v{t1}")


def x_frag_addrs(a, vbase, wr_sreg, t0, t1):
    a(f"v_and_b32 v{t0}, 31, v0")
    a(f"v_bfe_u32 v{t1}, v0, 1, 3")
    a(f"v_lshrrev_b32 v{vbase}, 5, v0")
    a(f"v_xor_b32 v{t1}, v{t1}, v{vbase}")
    a(f"v_lshlrev_b32 v{t1}, 4, v{t1}")
    a(f"v_lshlrev_b32 v{t0}, 7, v{t0}")
    a(f"v_add_u32 v{t0}, v{t0}, v{t1}")
    a(f"s_lshl_b32 s60, s{wr_sreg}, 13")
    a(f"v_add_u32 v{vbase}, s60, v{t0}")
    for s in range(1, 4):
        a(f"v_xor_b32 v{vbase+s}, {32*s}, v{vbase}")


def w256_frag_addr(a, vdst, wc_sreg, region, t0, t1, t2):
    a(f"v_bfe_u32 v{t0}, v0, 2, 2")
    a(f"v_lshrrev_b32 v{t1}, 5, v0")
    a(f"v_lshlrev_b32 v{t1}, 3, v{t1}")
    a(f"v_add_u32 v{t1}, v{t1}, v{t0}")
    a(f"v_lshlrev_b32 v{t1}, 8, v{t1}")
    a(f"v_xor_b32 v{t0}, s{wc_sreg}, v{t0}")
    a(f"v_lshlrev_b32 v{t0}, 6, v{t0}")
    a(f"v_add_u32 v{t1}, v{t1}, v{t0}")
    a(f"v_bfe_u32 v{t0}, v0, 4, 1")
    a(f"v_lshlrev_b32 v{t0}, 5, v{t0}")
    a(f"v_and_b32 v{t2}, 3, v0")
    a(f"v_lshlrev_b32 v{t2}, 3, v{t2}")
    a(f"v_add3_u32 v{t1}, v{t1}, v{t0}, v{t2}")
    a(f"v_add_u32 v{vdst}, 0x{region:x}, v{t1}")


def role_g1(a, task, pfx, end_label):
    RT, CT, WR, WC = 38, 39, 56, 57
    XS, WS_, LB = 58, 59, 61
    vXo, vWo, vXa, vWa = 1, 2, 3, 7
    FX = [8, 20]
    FW = [16, 28]
    ACC = 32
    XREG, WREG = 0, 49152
    a.c("---- G1: QKV tile ----")
    a(f"s_and_b32 s62, s{task}, 7")
    a(f"s_lshr_b32 s63, s{task}, 3")
    a(f"s_lshr_b32 s{RT}, s62, 1")
    a(f"s_lshl_b32 s{RT}, s{RT}, 2")
    a(f"s_and_b32 s60, s63, 3")
    a(f"s_add_u32 s{RT}, s{RT}, s60")
    a(f"s_and_b32 s{CT}, s62, 1")
    a(f"s_mul_i32 s{CT}, s{CT}, 6")
    a(f"s_lshr_b32 s60, s63, 2")
    a(f"s_add_u32 s{CT}, s{CT}, s60")
    a(f"s_lshr_b32 s{WR}, s{S_W}, 2")
    a(f"s_and_b32 s{WC}, s{S_W}, 3")
    x_dma_voffset(a, vXo, 8, 9)
    w256_dma_voffset(a, vWo, 3072, 8, 9)
    x_frag_addrs(a, vXa, WR, 8, 9)
    w256_frag_addr(a, vWa, WC, WREG, 8, 9, 10)
    a(f"s_lshl_b32 s{XS}, s{RT}, 7")
    a(f"s_lshl_b32 s60, s{S_W}, 3")
    a(f"s_add_u32 s{XS}, s{XS}, s60")
    a(f"s_lshl_b32 s{XS}, s{XS}, 10")
    a(f"s_mul_i32 s{WS_}, s{S_W}, {4*3072}")
    a(f"s_lshl_b32 s60, s{CT}, 8")
    a(f"s_add_u32 s{WS_}, s{WS_}, s60")
    a(f"s_lshl_b32 s{LB}, s{S_W}, 10")
    a("s_waitcnt lgkmcnt(0)")
    mk_srd(a, SRD0, P_AX, 2048 * 1024)
    mk_srd(a, SRD1, P_WQKV, 512 * 3072)
    mk_srd(a, SRD2, P_WS, WS_BYTES)

    def xdma(j):
        slot = j % 3
        dma(a, vXo, SRD0, XS, j * 128, LB, XREG + slot * 16384)
        dma(a, vXo, SRD0, XS, j * 128 + 65536, LB, XREG + slot * 16384 + 8192)

    def wdma(j):
        slot = j % 2
        dma(a, vWo, SRD1, WS_, j * 64 * 3072, LB, WREG + slot * 16384)
        dma(a, vWo, SRD1, WS_, j * 64 * 3072 + 32 * 3072, LB, WREG + slot * 16384 + 8192)

    def reads(j, s, buf):
        xs, wsl = (j % 3) * 16384, (j % 2) * 16384
        for tt in range(2):
            a(f"ds_read_b128 {vr(FX[buf]+4*tt,4)}, v{vXa+s} offset:{xs + tt*4096}")
        a(f"ds_read_b64_tr_b16 {vr(FW[buf],2)}, v{vWa} offset:{wsl + s*4096}")
        a(f"ds_read_b64_tr_b16 {vr(FW[buf]+2,2)}, v{vWa} offset:{wsl + s*4096 + 1024}")

    def mainloop(vtype):
        vm = VmTracker()
        xdma(0); vm.issue("X0", 2)
        wdma(0); vm.issue("W0", 2)
        xdma(1); vm.issue("X1", 2)
        wdma(1); vm.issue("W1", 2)
        xdma(2); vm.issue("X2", 2)
        for i in range(32):
            a(f"v_mov_b32 v{ACC+i}, 0")
        a(f"s_waitcnt vmcnt({vm.wait_for(['X0','W0'])})")
        a("s_barrier")
        reads(0, 0, 0)
        buf = 0
        for j in range(8):
            for s in range(4):
                if s < 3:
                    reads(j, s + 1, buf ^ 1)
                    a("s_waitcnt lgkmcnt(4)")
                else:
                    a("s_waitcnt lgkmcnt(0)")
                    if j < 7:
                        a(f"s_waitcnt vmcnt({vm.wait_for([f'X{j+1}', f'W{j+1}'])})")
                        a("s_barrier")
                        if j + 2 < 8:
                            wdma(j + 2); vm.issue(f"W{j+2}", 2)
                        if j + 3 < 8:
                            xdma(j + 3); vm.issue(f"X{j+3}", 2)
                        reads(j + 1, 0, buf ^ 1)
                for tt in range(2):
                    acc = vr(ACC + 16 * tt, 16)
                    if vtype:
                        a(f"v_mfma_f32_32x32x16_bf16 {acc}, {vr(FX[buf]+4*tt,4)}, {vr(FW[buf],4)}, {acc}")
                    else:
                        a(f"v_mfma_f32_32x32x16_bf16 {acc}, {vr(FW[buf],4)}, {vr(FX[buf]+4*tt,4)}, {acc}")
                buf ^= 1

    Lv = f"{pfx}_v"
    a(f"s_cmp_ge_u32 s{CT}, 8")
    a(f"s_cbranch_scc1 {Lv}")
    mainloop(False)
    a(f"s_and_b32 s60, s{CT}, 3")
    a(f"s_lshl_b32 s60, s60, 3")
    a(f"s_lshl_b32 s62, s{WC}, 1")
    a(f"s_add_u32 s60, s60, s62")
    a(f"s_lshl_b32 s60, s60, 16")
    a(f"s_lshl_b32 s62, s{RT}, 2")
    a(f"s_lshl_b32 s63, s{WR}, 1")
    a(f"s_add_u32 s62, s62, s63")
    a(f"s_lshl_b32 s62, s62, 10")
    a(f"s_add_u32 s60, s60, s62")
    a(f"v_lshlrev_b32 v1, 4, v0")
    a(f"s_cmp_lt_u32 s{CT}, 4")
    a(f"s_cselect_b32 s62, 0x{QSCALE:x}, 1.0")
    a(f"s_cbranch_scc1 {pfx}_isq")
    a(f"s_add_u32 s60, s60, 0x{KF:x}")
    a("v_and_b32 v2, 0x33, v0")
    a("v_bfe_u32 v3, v0, 2, 1")
    a("v_lshlrev_b32 v3, 3, v3")
    a("v_bfe_u32 v4, v0, 3, 1")
    a("v_lshlrev_b32 v4, 2, v4")
    a("v_or3_b32 v2, v2, v3, v4")
    a("v_lshlrev_b32 v1, 4, v2")
    a.label(f"{pfx}_isq")
    a("s_nop 7")
    a("s_nop 7")
    for tt in range(2):
        for i in range(16):
            a(f"v_mul_f32 v{ACC+16*tt+i}, s62, v{ACC+16*tt+i}")
        for hh in range(2):
            d = 8 + 4 * (2 * tt + hh)
            for i in range(4):
                r = ACC + 16 * tt + 8 * hh + 2 * i
                a(f"v_cvt_pk_bf16_f32 v{d+i}, v{r}, v{r+1}")
            a(f"s_add_u32 s63, s60, {hh*65536 + tt*1024}")
            a(f"buffer_store_dwordx4 {vr(d,4)}, v1, s[{SRD2}:{SRD2+3}], s63 offen")
    a(f"s_branch {end_label}")
    a.label(Lv)
    mainloop(True)
    a(f"s_and_b32 s60, s{CT}, 3")
    a(f"s_lshl_b32 s60, s60, 3")
    a(f"s_lshl_b32 s62, s{WC}, 1")
    a(f"s_add_u32 s60, s60, s62")
    a(f"s_lshl_b32 s60, s60, 16")
    a(f"s_lshl_b32 s62, s{RT}, 2")
    a(f"s_lshl_b32 s63, s{WR}, 1")
    a(f"s_add_u32 s62, s62, s63")
    a(f"s_lshl_b32 s62, s62, 10")
    a(f"s_add_u32 s60, s60, s62")
    a(f"s_add_u32 s60, s60, 0x{VF:x}")
    a("v_bfe_u32 v2, v0, 4, 1")
    a("v_lshlrev_b32 v2, 16, v2")
    a("v_lshrrev_b32 v3, 5, v0")
    a("v_lshlrev_b32 v3, 8, v3")
    a("v_and_b32 v4, 15, v0")
    a("v_lshlrev_b32 v4, 4, v4")
    a("v_add3_u32 v1, v2, v3, v4")
    a("s_nop 7")
    a("s_nop 7")
    for tt in range(2):
        for jj in range(2):
            d = 8 + 4 * (2 * tt + jj)
            for i in range(4):
                r = ACC + 16 * tt + 8 * jj + 2 * i
                a(f"v_cvt_pk_bf16_f32 v{d+i}, v{r}, v{r+1}")
            a(f"s_add_u32 s63, s60, {tt*1024 + jj*512}")
            a(f"buffer_store_dwordx4 {vr(d,4)}, v1, s[{SRD2}:{SRD2+3}], s63 offen")
    a(f"s_branch {end_label}")


def role_gate(a, task, pfx, end_label):
    a.c("---- gate ----")
    a("s_waitcnt lgkmcnt(0)")
    mk_srd(a, SRD0, P_AX, 2048 * 1024)
    mk_srd(a, SRD1, P_GW, 1024)
    mk_srd(a, SRD2, P_WS, WS_BYTES)
    a(f"s_lshl_b32 s60, s{task}, 5")
    a(f"s_lshl_b32 s61, s{S_W}, 2")
    a(f"s_add_u32 s60, s60, s61")
    a(f"s_lshl_b32 s61, s60, 10")
    a("v_lshlrev_b32 v1, 4, v0")
    a(f"buffer_load_dwordx4 v[4:7], v1, s[{SRD1}:{SRD1+3}], 0 offen")
    for r in range(4):
        a(f"s_add_u32 s62, s61, {r*1024}")
        a(f"buffer_load_dwordx4 v[{8+4*r}:{11+4*r}], v1, s[{SRD0}:{SRD0+3}], s62 offen")
    a("s_waitcnt vmcnt(0)")
    for r in range(4):
        a(f"v_mov_b32 v{28+r}, 0")
    for i in range(4):
        for r in range(4):
            a(f"v_dot2_f32_bf16 v{28+r}, v{8+4*r+i}, v{4+i}, v{28+r}")
    a("s_nop 2")
    for sh in ("row_shr:1", "row_shr:2", "row_shr:4", "row_shr:8"):
        for r in range(4):
            a(f"v_add_f32_dpp v{28+r}, v{28+r}, v{28+r} {sh} row_mask:0xf bank_mask:0xf bound_ctrl:0")
        a("s_nop 1")
    for r in range(4):
        a(f"v_add_f32_dpp v{28+r}, v{28+r}, v{28+r} row_bcast:15 row_mask:0xa bank_mask:0xf")
    a("s_nop 1")
    for r in range(4):
        a(f"v_add_f32_dpp v{28+r}, v{28+r}, v{28+r} row_bcast:31 row_mask:0xc bank_mask:0xf")
    a("s_nop 1")
    for r in range(4):
        a(f"v_mul_f32 v{28+r}, 0xbfb8aa3b, v{28+r}")
    for r in range(4):
        a(f"v_exp_f32 v{28+r}, v{28+r}")
    a("s_nop 0")
    for r in range(4):
        a(f"v_add_f32 v{28+r}, 1.0, v{28+r}")
    for r in range(4):
        a(f"v_rcp_f32 v{28+r}, v{28+r}")
    a("s_nop 0")
    a("v_cmp_eq_u32 vcc, 63, v0")
    a("s_and_saveexec_b64 s[62:63], vcc")
    a(f"s_lshl_b32 s61, s60, 2")
    a(f"s_add_u32 s61, s61, 0x{GV:x}")
    a("v_mov_b32 v1, 0")
    a(f"buffer_store_dwordx4 v[28:31], v1, s[{SRD2}:{SRD2+3}], s61 offen")
    a(f"s_branch {end_label}")


def role_g2(a, task, pfx, end_label):
    RT, CT, WR, WC = 38, 39, 56, 57
    XS, WS_, LB = 58, 59, 61
    vXo, vWo, vXa, vWa = 1, 2, 3, 7
    FX = [8, 24]
    FG = [16, 32]
    FU = [20, 36]
    AG, AU = 40, 72
    XREG, WREG = 0, 32768
    a.c("---- G2: gate/up tile ----")
    a(f"s_and_b32 s62, s{task}, 7")
    a(f"s_lshr_b32 s63, s{task}, 3")
    a(f"s_and_b32 s60, s62, 1")
    a(f"s_mul_i32 s60, s60, 22")
    a(f"s_add_u32 s63, s63, s60")
    a(f"s_lshr_b32 s{CT}, s63, 2")
    a(f"s_lshr_b32 s{RT}, s62, 1")
    a(f"s_lshl_b32 s{RT}, s{RT}, 2")
    a(f"s_and_b32 s60, s63, 3")
    a(f"s_add_u32 s{RT}, s{RT}, s60")
    a(f"s_lshr_b32 s{WR}, s{S_W}, 2")
    a(f"s_and_b32 s{WC}, s{S_W}, 3")
    x_dma_voffset(a, vXo, 8, 9)
    w256_dma_voffset(a, vWo, 2752, 8, 9)
    x_frag_addrs(a, vXa, WR, 8, 9)
    w256_frag_addr(a, vWa, WC, WREG, 8, 9, 10)
    a(f"s_lshl_b32 s{XS}, s{RT}, 7")
    a(f"s_lshl_b32 s60, s{S_W}, 3")
    a(f"s_add_u32 s{XS}, s{XS}, s60")
    a(f"s_lshl_b32 s{XS}, s{XS}, 10")
    a(f"s_mul_i32 s{WS_}, s{S_W}, {4*2752}")
    a(f"s_lshl_b32 s60, s{CT}, 8")
    a(f"s_add_u32 s{WS_}, s{WS_}, s60")
    a(f"s_lshl_b32 s{LB}, s{S_W}, 10")
    a("s_waitcnt lgkmcnt(0)")
    mk_srd(a, SRD0, P_AX, 2048 * 1024)
    mk_srd(a, SRD1, P_WG, 512 * 2752)
    mk_srd(a, SRD3, P_WU, 512 * 2752)
    mk_srd(a, SRD2, P_WS, WS_BYTES)

    def xdma(j):
        slot = j % 2
        dma(a, vXo, SRD0, XS, j * 128, LB, XREG + slot * 16384)
        dma(a, vXo, SRD0, XS, j * 128 + 65536, LB, XREG + slot * 16384 + 8192)

    def wdma(u):
        slot = u % 3
        dma(a, vWo, SRD1, WS_, u * 32 * 2752, LB, WREG + slot * 16384)
        dma(a, vWo, SRD3, WS_, u * 32 * 2752, LB, WREG + slot * 16384 + 8192)

    def reads(u, s, buf):
        xs, wsl = ((u >> 1) % 2) * 16384, (u % 3) * 16384
        sx = 2 * (u & 1) + s
        for tt in range(2):
            a(f"ds_read_b128 {vr(FX[buf]+4*tt,4)}, v{vXa+sx} offset:{xs + tt*4096}")
        for F, mo in ((FG, 0), (FU, 8192)):
            a(f"ds_read_b64_tr_b16 {vr(F[buf],2)}, v{vWa} offset:{wsl + mo + s*4096}")
            a(f"ds_read_b64_tr_b16 {vr(F[buf]+2,2)}, v{vWa} offset:{wsl + mo + s*4096 + 1024}")

    vm = VmTracker()
    xdma(0); vm.issue("X0", 2)
    wdma(0); vm.issue("W0", 2)
    wdma(1); vm.issue("W1", 2)
    xdma(1); vm.issue("X1", 2)
    wdma(2); vm.issue("W2", 2)
    for i in range(64):
        a(f"v_mov_b32 v{AG+i}, 0")
    a(f"s_waitcnt vmcnt({vm.wait_for(['X0','W0'])})")
    a("s_barrier")
    reads(0, 0, 0)
    buf = 0
    for u in range(16):
        for s in range(2):
            if s == 0:
                reads(u, 1, buf ^ 1)
                a("s_waitcnt lgkmcnt(6)")
            else:
                a("s_waitcnt lgkmcnt(0)")
                if u < 15:
                    a(f"s_waitcnt vmcnt({vm.wait_for([f'W{u+1}', f'X{(u+1)>>1}'])})")
                    a("s_barrier")
                    if u + 3 < 16:
                        wdma(u + 3); vm.issue(f"W{u+3}", 2)
                    if (u & 1) and (u >> 1) + 2 < 8:
                        xdma((u >> 1) + 2); vm.issue(f"X{(u>>1)+2}", 2)
                    reads(u + 1, 0, buf ^ 1)
            for tt in range(2):
                ag, au = vr(AG + 16 * tt, 16), vr(AU + 16 * tt, 16)
                a(f"v_mfma_f32_32x32x16_bf16 {ag}, {vr(FG[buf],4)}, {vr(FX[buf]+4*tt,4)}, {ag}")
                a(f"v_mfma_f32_32x32x16_bf16 {au}, {vr(FU[buf],4)}, {vr(FX[buf]+4*tt,4)}, {au}")
            buf ^= 1
    a(f"s_lshl_b32 s62, s{RT}, 2")
    a(f"s_lshl_b32 s63, s{WR}, 1")
    a(f"s_add_u32 s62, s62, s63")
    a(f"s_mul_i32 s62, s62, {HSTEPS}")
    a(f"s_lshl_b32 s60, s{CT}, 3")
    a(f"s_lshl_b32 s63, s{WC}, 1")
    a(f"s_add_u32 s60, s60, s63")
    a(f"s_cmp_ge_u32 s60, 86")
    a(f"s_cselect_b32 s64, 0, 1.0")
    a(f"s_add_u32 s60, s60, s62")
    a(f"s_lshl_b32 s60, s60, 10")
    a(f"s_add_u32 s60, s60, 0x{HF:x}")
    a("v_lshlrev_b32 v1, 4, v0")
    a("s_nop 7")
    a("s_nop 7")
    T = 8
    for tt in range(2):
        for hh in range(2):
            g0, u0 = AG + 16 * tt + 8 * hh, AU + 16 * tt + 8 * hh
            for i in range(8):
                a(f"v_mul_f32 v{T+i}, 0xbfb8aa3b, v{g0+i}")
            for i in range(8):
                a(f"v_exp_f32 v{T+i}, v{T+i}")
            for i in range(8):
                a(f"v_mul_f32 v{u0+i}, v{g0+i}, v{u0+i}")
            for i in range(8):
                a(f"v_add_f32 v{T+i}, 1.0, v{T+i}")
            for i in range(8):
                a(f"v_rcp_f32 v{T+i}, v{T+i}")
            for i in range(8):
                a(f"v_mul_f32 v{u0+i}, s64, v{u0+i}")
            for i in range(8):
                a(f"v_mul_f32 v{u0+i}, v{u0+i}, v{T+i}")
            d = 16 + 4 * (2 * tt + hh)
            for i in range(4):
                a(f"v_cvt_pk_bf16_f32 v{d+i}, v{u0+2*i}, v{u0+2*i+1}")
            a(f"s_add_u32 s63, s60, {tt*HSTEPS*1024 + hh*1024}")
            a(f"buffer_store_dwordx4 {vr(d,4)}, v1, s[{SRD2}:{SRD2+3}], s63 offen")
    a(f"s_branch {end_label}")


def role_attn(a, task, pfx, end_label):
    H, QB, QG, KH, ST = 38, 39, 56, 57, 58
    GS, LB = 59, 61
    MSK = 64
    vKa, vVa, vDo = 1, 2, 3
    SA, SB, OA, OB = 16, 32, 48, 64
    QA, QBf = 80, 84
    KB = [88, 92]
    VB = [96, 104]
    IDX = 112
    a.c("---- attention ----")
    a(f"s_and_b32 s62, s{task}, 7")
    a(f"s_lshr_b32 s63, s{task}, 3")
    a(f"s_lshl_b32 s{H}, s62, 2")
    a(f"s_lshr_b32 s60, s63, 3")
    a(f"s_add_u32 s{H}, s{H}, s60")
    a(f"s_and_b32 s{QB}, s63, 7")
    a(f"s_and_b32 s{QG}, s{S_W}, 3")
    a(f"s_lshr_b32 s{KH}, s{S_W}, 2")
    a(f"s_lshl_b32 s{GS}, s{H}, 16")
    a(f"s_lshl_b32 s60, s{KH}, 15")
    a(f"s_add_u32 s{GS}, s{GS}, s60")
    a(f"s_lshl_b32 s60, s{QG}, 10")
    a(f"s_add_u32 s{GS}, s{GS}, s60")
    a(f"s_lshl_b32 s{LB}, s{KH}, 13")
    a(f"s_add_u32 s{LB}, s{LB}, s60")
    a(f"v_lshlrev_b32 v{vDo}, 4, v0")
    a(f"s_lshl_b32 s60, s{KH}, 13")
    a(f"v_add_u32 v{vKa}, s60, v{vDo}")
    a(f"v_lshrrev_b32 v4, 5, v0")
    a(f"v_lshlrev_b32 v4, 8, v4")
    a(f"v_and_b32 v5, 15, v0")
    a(f"v_lshlrev_b32 v5, 4, v5")
    a(f"s_add_u32 s60, s60, 4096")
    a(f"v_add3_u32 v{vVa}, v4, v5, s60")
    a(f"s_mov_b32 s{MSK}, 0x0000ffff")
    a(f"s_mov_b32 s{MSK+1}, 0x0000ffff")
    a("s_waitcnt lgkmcnt(0)")
    mk_srd(a, SRD2, P_WS, WS_BYTES)

    def kvdma(st_imm=None, slot=None, dyn=False):
        if not dyn:
            dma(a, vDo, SRD2, GS, KF + st_imm * 4096, LB, slot * 16384)
            dma(a, vDo, SRD2, GS, VF + st_imm * 4096, LB, slot * 16384 + 4096)

    a(f"s_lshl_b32 s60, s{H}, 6")
    a(f"s_lshl_b32 s62, s{QB}, 3")
    a(f"s_add_u32 s60, s60, s62")
    a(f"s_lshl_b32 s62, s{QG}, 1")
    a(f"s_add_u32 s60, s60, s62")
    a(f"s_lshl_b32 s60, s60, 10")
    a(f"s_add_u32 s62, s60, 1024")
    a(f"buffer_load_dwordx4 {vr(QA,4)}, v{vDo}, s[{SRD2}:{SRD2+3}], s60 offen")
    a(f"buffer_load_dwordx4 {vr(QBf,4)}, v{vDo}, s[{SRD2}:{SRD2+3}], s62 offen")
    for st in range(3):
        kvdma(st, st)
    for i in range(16):
        a(f"v_mov_b32 v{OA+i}, 0")
        a(f"v_mov_b32 v{OB+i}, 0")
        a(f"v_mov_b32 v{SB+i}, 0")
    a(f"v_mov_b32 v{IDX}, 0xdddddddd")
    a("v_and_b32 v4, 16, v0")
    a("v_cmp_ne_u32 vcc, 0, v4")
    a("v_mov_b32 v5, 0x3f803f80")
    a("s_nop 1")
    for i in range(16):
        a(f"v_cndmask_b32 v{VB[0]+i}, 0, v5, vcc")
    NXT, SLOT = 66, 67
    a(f"s_add_u32 s{NXT}, s{GS}, {3*4096}")
    a(f"s_mov_b32 s{SLOT}, {3*16384}")
    a(f"s_mov_b32 s{ST}, 0")
    a("s_waitcnt vmcnt(4)")
    a("s_barrier")

    def kread(buf, off):
        a(f"ds_read_b128 {vr(KB[buf],4)}, v{vKa} offset:{off}")

    def vread(buf, off):
        a(f"s_mov_b64 exec, s[{MSK}:{MSK+1}]")
        a(f"ds_read_b128 {vr(VB[buf],4)}, v{vVa} offset:{off}")
        a(f"ds_read_b128 {vr(VB[buf]+4,4)}, v{vVa} offset:{off+512}")
        a("s_mov_b64 exec, -1")

    kread(0, 0)
    vread(0, 0)
    a("s_waitcnt lgkmcnt(0)")
    a(f"v_mfma_f32_32x32x16_bf16 {vr(SA,16)}, {vr(KB[0],4)}, {vr(QA,4)}, 0")
    a("s_nop 7")
    a("s_nop 7")
    Lloop = f"{pfx}_loop"
    a(".p2align 6")
    a.label(Lloop)
    for b in range(4):
        cur, nxt = b & 1, (b & 1) ^ 1
        exA = [f"v_exp_f32 v{SA+i}, v{SA+i}" for i in range(16)]
        exB = [f"v_exp_f32 v{SB+i}, v{SB+i}" for i in range(16)]
        if b == 3:
            Lt, Lj = a.uid(pfx + "_t"), a.uid(pfx + "_j")
            a(f"s_cmp_lt_u32 s{ST}, 5")
            a(f"s_cbranch_scc0 {Lt}")
            a("s_waitcnt vmcnt(2)")
            a("s_barrier")
            a(f"s_add_u32 m0, s{LB}, s{SLOT}")
            a(f"s_add_u32 s60, s{NXT}, 0x{KF:x}")
            a(f"buffer_load_dwordx4 v{vDo}, s[{SRD2}:{SRD2+3}], s60 offen lds")
            a(f"s_add_u32 m0, m0, 4096")
            a(f"s_add_u32 s60, s{NXT}, 0x{VF:x}")
            a(f"buffer_load_dwordx4 v{vDo}, s[{SRD2}:{SRD2+3}], s60 offen lds")
            a(f"s_add_u32 s{NXT}, s{NXT}, 4096")
            a(f"s_add_u32 s{SLOT}, s{SLOT}, 16384")
            a(f"s_and_b32 s{SLOT}, s{SLOT}, 0xffff")
            a(f"s_branch {Lj}")
            a.label(Lt)
            a("s_waitcnt vmcnt(0)")
            a("s_barrier")
            a.label(Lj)
            a(f"v_add_u32 v{vKa}, 16384, v{vKa}")
            a(f"v_add_u32 v{vVa}, 16384, v{vVa}")
            a(f"v_and_b32 v{vKa}, 0xffff, v{vKa}")
            a(f"v_and_b32 v{vVa}, 0xffff, v{vVa}")
            noff = 0
        else:
            noff = (b + 1) * 1024
        a(exA[0])
        kread(nxt, noff)
        a(f"v_smfmac_f32_32x32x32_bf16 {vr(OB,16)}, {vr(VB[nxt],4)}, {vr(SB,8)}, v{IDX}")
        for e in exA[1:4]:
            a(e)
        a(f"v_smfmac_f32_32x32x32_bf16 {vr(OB,16)}, {vr(VB[nxt]+4,4)}, {vr(SB+8,8)}, v{IDX}")
        for e in exA[4:7]:
            a(e)
        a(f"v_mfma_f32_32x32x16_bf16 {vr(SB,16)}, {vr(KB[cur],4)}, {vr(QBf,4)}, 0")
        vread(nxt, noff)
        for e in exA[7:16]:
            a(e)
        a("s_waitcnt lgkmcnt(2)")
        a(exB[0])
        a(f"v_smfmac_f32_32x32x32_bf16 {vr(OA,16)}, {vr(VB[cur],4)}, {vr(SA,8)}, v{IDX}")
        for e in exB[1:4]:
            a(e)
        a(f"v_smfmac_f32_32x32x32_bf16 {vr(OA,16)}, {vr(VB[cur]+4,4)}, {vr(SA+8,8)}, v{IDX}")
        for e in exB[4:7]:
            a(e)
        a(f"v_mfma_f32_32x32x16_bf16 {vr(SA,16)}, {vr(KB[nxt],4)}, {vr(QA,4)}, 0")
        for e in exB[7:16]:
            a(e)
    a(f"s_add_u32 s{ST}, s{ST}, 1")
    a(f"s_cmp_lt_u32 s{ST}, 8")
    a(f"s_cbranch_scc1 {Lloop}")
    a(f"v_smfmac_f32_32x32x32_bf16 {vr(OB,16)}, {vr(VB[1],4)}, {vr(SB,8)}, v{IDX}")
    a(f"v_smfmac_f32_32x32x32_bf16 {vr(OB,16)}, {vr(VB[1]+4,4)}, {vr(SB+8,8)}, v{IDX}")
    a("s_waitcnt lgkmcnt(0)")
    a("s_barrier")
    a(f"s_mul_i32 s60, s{QG}, {2*64*48}")
    a("v_mul_u32_u24 v4, 48, v0")
    a("v_add_u32 v4, s60, v4")
    a("s_nop 7")
    a("s_nop 7")
    Lw = f"{pfx}_kh1"
    a(f"s_cmp_eq_u32 s{KH}, 0")
    a(f"s_cbranch_scc1 {Lw}")
    for t, O in enumerate((OA, OB)):
        for q in range(3):
            a(f"ds_write_b128 v4, {vr(O+4*q,4)} offset:{t*3072 + q*16}")
    a("s_waitcnt lgkmcnt(0)")
    a("s_barrier")
    a(f"s_branch {end_label}")
    a.label(Lw)
    a("s_barrier")
    for t in range(2):
        for q in range(3):
            a(f"ds_read_b128 {vr(80+12*t+4*q,4)}, v4 offset:{t*3072 + q*16}")
    a("s_waitcnt lgkmcnt(0)")
    for t, O in enumerate((OA, OB)):
        for i in range(9):
            a(f"v_add_f32 v{O+i}, v{O+i}, v{80+12*t+i}")
    for t, O in enumerate((OA, OB)):
        a(f"v_rcp_f32 v{O+8}, v{O+8}")
    a("s_nop 0")
    a(f"s_lshl_b32 s60, s{QB}, 3")
    a(f"s_lshl_b32 s62, s{QG}, 1")
    a(f"s_add_u32 s60, s60, s62")
    a(f"s_lshl_b32 s60, s60, 5")
    a(f"s_add_u32 s60, s60, s{H}")
    a(f"s_lshl_b32 s60, s60, 10")
    a(f"s_add_u32 s60, s60, 0x{OF:x}")
    for t, O in enumerate((OA, OB)):
        for i in range(8):
            a(f"v_mul_f32 v{O+i}, v{O+i}, v{O+8}")
        for i in range(4):
            a(f"v_cvt_pk_bf16_f32 v{80+4*t+i}, v{O+2*i}, v{O+2*i+1}")
        a(f"s_add_u32 s62, s60, {t*32*1024}")
        a(f"buffer_store_dwordx4 {vr(80+4*t,4)}, v{vDo}, s[{SRD2}:{SRD2+3}], s62 offen")
    a(f"s_branch {end_label}")


def role_g3(a, task, pfx, end_label):
    RT, CT, TR, TC, KHh = 38, 39, 56, 57, 58
    AS, WS_, LB = 59, 62, 61
    vAo, vWo, vAa, vWa, vG = 1, 2, 3, 4, 5
    FA = [8, 16]
    FW = [12, 20]
    ACCB, ACCA = 32, 48
    NS = 5
    a.c("---- G3: final tile ----")
    a(f"s_and_b32 s63, s{task}, 7")
    a(f"s_lshr_b32 s64, s{task}, 3")
    a(f"s_lshl_b32 s{RT}, s63, 2")
    a(f"s_and_b32 s60, s64, 3")
    a(f"s_add_u32 s{RT}, s{RT}, s60")
    a(f"s_lshr_b32 s{CT}, s64, 2")
    a(f"s_bfe_u32 s{TR}, s{S_W}, 0x10001")
    a(f"s_and_b32 s{TC}, s{S_W}, 1")
    a(f"s_lshr_b32 s{KHh}, s{S_W}, 2")
    a(f"v_lshlrev_b32 v{vAo}, 4, v0")
    a("v_bfe_u32 v8, v0, 2, 1")
    a("v_bfe_u32 v9, v0, 4, 1")
    a("v_xor_b32 v8, v8, v9")
    a("v_lshlrev_b32 v8, 6, v8")
    a("v_and_b32 v9, 3, v0")
    a("v_lshlrev_b32 v9, 4, v9")
    a("v_lshrrev_b32 v10, 3, v0")
    a("v_lshlrev_b32 v10, 10, v10")
    a(f"v_add3_u32 v{vWo}, v8, v9, v10")
    a(f"s_lshl_b32 s60, s{TR}, 12")
    a(f"s_lshl_b32 s63, s{KHh}, 11")
    a(f"s_add_u32 s60, s60, s63")
    a(f"v_add_u32 v{vAa}, s60, v{vAo}")
    a("v_lshrrev_b32 v8, 5, v0")
    a("v_lshlrev_b32 v8, 2, v8")
    a("v_bfe_u32 v9, v0, 2, 2")
    a("v_add_u32 v8, v8, v9")
    a("v_lshlrev_b32 v8, 7, v8")
    a("v_bfe_u32 v9, v0, 3, 1")
    a(f"v_xor_b32 v9, s{TC}, v9")
    a("v_lshlrev_b32 v9, 6, v9")
    a("v_add_u32 v8, v8, v9")
    a("v_bfe_u32 v9, v0, 4, 1")
    a("v_lshlrev_b32 v9, 5, v9")
    a("v_and_b32 v10, 3, v0")
    a("v_lshlrev_b32 v10, 3, v10")
    a("v_add3_u32 v8, v8, v9, v10")
    a(f"s_lshl_b32 s60, s{KHh}, 12")
    a(f"s_add_u32 s60, s60, 8192")
    a(f"v_add_u32 v{vWa}, s60, v8")
    AH, AO = 65, 66
    a(f"s_lshl_b32 s60, s{RT}, 1")
    a(f"s_add_u32 s60, s60, s{KHh}")
    a(f"s_and_b32 s63, s{S_W}, 3")
    a(f"s_mul_i32 s{AH}, s60, {HSTEPS}")
    a(f"s_add_u32 s{AH}, s{AH}, s63")
    a(f"s_lshl_b32 s{AH}, s{AH}, 10")
    a(f"s_add_u32 s{AH}, s{AH}, 0x{HF:x}")
    a(f"s_lshl_b32 s{AO}, s60, 5")
    a(f"s_add_u32 s{AO}, s{AO}, s63")
    a(f"s_lshl_b32 s{AO}, s{AO}, 10")
    a(f"s_add_u32 s{AO}, s{AO}, 0x{OF:x}")
    a(f"s_lshl_b32 s{WS_}, s{S_W}, 13")
    a(f"s_lshl_b32 s60, s{CT}, 7")
    a(f"s_add_u32 s{WS_}, s{WS_}, s60")
    a(f"s_lshl_b32 s{LB}, s{S_W}, 10")
    a(f"s_lshl_b32 s60, s{RT}, 6")
    a(f"s_lshl_b32 s63, s{TR}, 5")
    a(f"s_add_u32 s60, s60, s63")
    a(f"s_lshl_b32 s60, s60, 2")
    a(f"s_add_u32 s67, s60, 0x{GV:x}")
    a("v_and_b32 v8, 31, v0")
    a("v_lshlrev_b32 v8, 2, v8")
    a("s_waitcnt lgkmcnt(0)")
    mk_srd(a, SRD0, P_WD, 1376 * 1024)
    mk_srd(a, SRD1, P_WO, 512 * 1024)
    mk_srd(a, SRD2, P_WS, WS_BYTES)
    mk_srd(a, SRD3, P_OUT, 2048 * 1024)
    vm = VmTracker()
    a(f"buffer_load_dword v{vG}, v8, s[{SRD2}:{SRD2+3}], s67 offen")
    vm.issue("G")
    stages = [("H", i) for i in range(22)] + [("O", i) for i in range(8)]

    def sdma(n):
        kind, i = stages[n]
        slot = n % NS
        if kind == "H":
            dma(a, vAo, SRD2, AH, i * 4096, LB, slot * 16384)
            dma(a, vWo, SRD0, WS_, i * 64 * 1024, LB, slot * 16384 + 8192)
        else:
            dma(a, vAo, SRD2, AO, i * 4096, LB, slot * 16384)
            dma(a, vWo, SRD1, WS_, i * 64 * 1024, LB, slot * 16384 + 8192)
        vm.issue(f"S{n}", 2)

    vAa2, vWa2 = 6, 7
    a(f"v_add_u32 v{vAa2}, 0x10000, v{vAa}")
    a(f"v_add_u32 v{vWa2}, 0x10000, v{vWa}")

    def reads(n, s, buf):
        slot = n % NS
        ra, rw, so = (vAa, vWa, slot * 16384) if slot < 4 else (vAa2, vWa2, 0)
        a(f"ds_read_b128 {vr(FA[buf],4)}, v{ra} offset:{so + s*1024}")
        a(f"ds_read_b64_tr_b16 {vr(FW[buf],2)}, v{rw} offset:{so + s*2048}")
        a(f"ds_read_b64_tr_b16 {vr(FW[buf]+2,2)}, v{rw} offset:{so + s*2048 + 1024}")

    for n in range(NS):
        sdma(n)
    for i in range(32):
        a(f"v_mov_b32 v{ACCB+i}, 0")
    a(f"s_waitcnt vmcnt({vm.wait_for(['S0'])})")
    a("s_barrier")
    reads(0, 0, 0)
    buf = 0
    N = len(stages)
    for n in range(N):
        acc = ACCB if stages[n][0] == "H" else ACCA
        for s in range(2):
            if s == 0:
                reads(n, 1, buf ^ 1)
                a("s_waitcnt lgkmcnt(3)")
            else:
                a("s_waitcnt lgkmcnt(0)")
                if n < N - 1:
                    a(f"s_waitcnt vmcnt({vm.wait_for([f'S{n+1}'])})")
                    a("s_barrier")
                    if n + NS < N:
                        sdma(n + NS)
                    reads(n + 1, 0, buf ^ 1)
            a(f"v_mfma_f32_32x32x16_bf16 {vr(acc,16)}, {vr(FW[buf],4)}, {vr(FA[buf],4)}, {vr(acc,16)}")
            buf ^= 1
    a("s_nop 7")
    a("s_nop 7")
    a(f"v_sub_f32 v6, 1.0, v{vG}")
    for i in range(16):
        a(f"v_mul_f32 v{ACCB+i}, v6, v{ACCB+i}")
    for i in range(16):
        a(f"v_fmac_f32 v{ACCB+i}, v{vG}, v{ACCA+i}")
    a("s_barrier")
    a("v_and_b32 v8, 31, v0")
    a(f"s_lshl_b32 s60, s{TR}, 5")
    a("v_add_u32 v8, s60, v8")
    a("v_mul_u32_u24 v8, 272, v8")
    a("v_lshrrev_b32 v9, 5, v0")
    a("v_lshlrev_b32 v9, 4, v9")
    a(f"s_mul_i32 s60, s{KHh}, {64*272}")
    a(f"s_lshl_b32 s63, s{TC}, 7")
    a("s_add_u32 s60, s60, s63")
    a("v_add3_u32 v8, v8, v9, s60")
    for q in range(4):
        a(f"ds_write_b128 v8, {vr(ACCB+4*q,4)} offset:{q*32}")
    a("s_waitcnt lgkmcnt(0)")
    a("s_barrier")
    a(f"s_lshl_b32 s60, s{S_W}, 3")
    a("v_lshrrev_b32 v8, 3, v0")
    a("v_add_u32 v8, s60, v8")
    a("v_and_b32 v9, 7, v0")
    a("v_mul_u32_u24 v10, 272, v8")
    a("v_lshlrev_b32 v11, 5, v9")
    a("v_add_u32 v10, v10, v11")
    a("ds_read_b128 v[12:15], v10")
    a("ds_read_b128 v[16:19], v10 offset:16")
    a(f"ds_read_b128 v[20:23], v10 offset:{64*272}")
    a(f"ds_read_b128 v[24:27], v10 offset:{64*272+16}")
    a("v_lshlrev_b32 v8, 10, v8")
    a("v_lshlrev_b32 v9, 4, v9")
    a("v_add_u32 v8, v8, v9")
    a(f"s_lshl_b32 s60, s{RT}, 16")
    a(f"s_lshl_b32 s63, s{CT}, 7")
    a("s_add_u32 s60, s60, s63")
    a("s_waitcnt lgkmcnt(0)")
    for i in range(8):
        a(f"v_add_f32 v{12+i}, v{12+i}, v{20+i}")
    for i in range(4):
        a(f"v_cvt_pk_bf16_f32 v{28+i}, v{12+2*i}, v{13+2*i}")
    a(f"buffer_store_dwordx4 v[28:31], v8, s[{SRD3}:{SRD3+3}], s60 offen")
    a(f"s_branch {end_label}")
```

```python
import sys
from asmlib import *
from roles import *

NAME = "gated_mix__mha_block__swiglu_ffn__prompt"
HDR = open("cdna_kernels/" + NAME + ".s.ref").read().split("; Override launch")[0]

def build():
    out = [HDR.rstrip("\n")]
    out.append(f"; @launch kernel={NAME}_kernel grid=(512,1,1) block=(512,1,1) lds=81920")
    out.append(f"; @launch kernel=attn_kernel grid=(256,1,1) block=(512,1,1) lds=81920")
    out.append(f"; @launch kernel=final_kernel grid=(256,1,1) block=(512,1,1) lds=81920")
    out.append('.amdgcn_target "amdgcn-amd-amdhsa--gfx950"')
    a = Asm()
    common_prologue(a)
    a("s_cmp_ge_u32 s2, 512")
    a("s_cbranch_scc1 K1_end")
    a("s_cmp_ge_u32 s2, 336")
    a("s_cbranch_scc1 K1_g2")
    a("s_cmp_ge_u32 s2, 256")
    a("s_cbranch_scc1 K1_end")
    a("s_cmp_ge_u32 s2, 192")
    a("s_cbranch_scc1 K1_gate")
    a("s_mov_b32 s4, s2")
    role_g1(a, 4, "K1g1", "K1_end")
    a.label("K1_gate")
    a("s_sub_u32 s4, s2, 192")
    role_gate(a, 4, "K1gt", "K1_end")
    a.label("K1_g2")
    a("s_sub_u32 s4, s2, 336")
    role_g2(a, 4, "K1g2", "K1_end")
    a.label("K1_end")
    a("s_endpgm")
    out.append(kernel_header(NAME + "_kernel") + a.text())
    a = Asm()
    common_prologue(a)
    a("s_cmp_ge_u32 s2, 256")
    a("s_cbranch_scc1 K2_end")
    a("s_mov_b32 s4, s2")
    role_attn(a, 4, "K2a", "K2_end")
    a.label("K2_end")
    a("s_endpgm")
    out.append(kernel_header("attn_kernel") + a.text())
    a = Asm()
    common_prologue(a)
    a("s_cmp_ge_u32 s2, 256")
    a("s_cbranch_scc1 K3_end")
    a("s_mov_b32 s4, s2")
    role_g3(a, 4, "K3f", "K3_end")
    a.label("K3_end")
    a("s_endpgm")
    out.append(kernel_header("final_kernel") + a.text())
    for n in (NAME + "_kernel", "attn_kernel", "final_kernel"):
        out.append(KD.format(name=n, vgpr=128, sgpr=96, accum=128))
    return "\n".join(out)

if __name__ == "__main__":
    path = sys.argv[1] if len(sys.argv) > 1 else "cdna_kernels/" + NAME + ".s"
    open(path, "w").write(build())
    print("wrote", path)
```

```python
import sys
from gen_v1 import *
base = build()
def with_empty(n):
    lines = base.split("\n")
    idx = max(i for i, l in enumerate(lines) if l.startswith("; @launch"))
    for _ in range(n):
        lines.insert(idx + 1, "; @launch kernel=empty_kernel grid=(256,1,1) block=(64,1,1) lds=0")
    s = "\n".join(lines)
    s = s.replace('.section .rodata,"a"', kernel_header("empty_kernel") + "    s_endpgm\n" + '.section .rodata,"a"', 1)
    s += KD.format(name="empty_kernel", vgpr=8, sgpr=16, accum=8)
    return s
for n in (1, 4, 8):
    open(f"e{n}.s", "w").write(with_empty(n))
```

```python
from asmlib import *

QF = 0
KF = 2 << 20
VF = 4 << 20
OF = 6 << 20
GV = 8 << 20
HF = 9 << 20
HSTEPS = 88
WS_BYTES = 16 << 20
FLG = 14 << 20
F_QKV = FLG
F_H = FLG + 192 * 128
F_O = F_H + 256 * 128
F_G = F_O + 256 * 128
EPOCH = F_G + 64 * 128
S_NONCE = 5
FUSED = False
ST_MODS = ""
LD_MODS = ""
SPIN_MAX = 1 << 15
QSCALE = 0x3EB8AA3B

S_W = 3
P_AX, P_WQKV, P_WO, P_BX, P_WG, P_WU, P_WD, P_GW = 16, 18, 20, 22, 24, 26, 28, 30
P_OUT, P_DBG, P_WS = 32, 34, 36
SRD0, SRD1, SRD2, SRD3 = 40, 44, 48, 52


PROF = False
PROF_OFF = 20 << 20
NSTAMP = 8
def stamp(a, i):
    if PROF:
        a(f"s_memtime s[{70+2*i}:{71+2*i}]")
        a("s_waitcnt lgkmcnt(0)")

def stamp_flush(a, kidx):
    if PROF:
        a("s_memtime s[86:87]")
        a("s_memrealtime s[88:89]")
        a("s_waitcnt vmcnt(0) lgkmcnt(0)")
        a("s_mov_b64 exec, 1")
        a("s_lshl_b32 s90, s2, 4")
        a("s_add_u32 s90, s90, s3")
        a("s_lshl_b32 s90, s90, 6")
        a(f"s_add_u32 s90, s90, 0x{PROF_OFF + kidx*(1<<19):x}")
        mk_srd(a, 92, P_WS, 32 << 20)
        for i in range(NSTAMP):
            a(f"v_mov_b32 v{8+i}, s{70+2*i}")
        a("v_mov_b32 v16, s86")
        a("v_mov_b32 v17, s88")
        a("v_mov_b32 v18, s68")
        a("v_mov_b32 v19, s69")
        a("v_mov_b32 v1, 0")
        a("buffer_store_dwordx4 v[8:11], v1, s[92:95], s90 offen")
        a("buffer_store_dwordx4 v[12:15], v1, s[92:95], s90 offen offset:16")
        a("buffer_store_dwordx4 v[16:19], v1, s[92:95], s90 offen offset:32")

def common_prologue(a):
    if PROF:
        a("s_memrealtime s[68:69]")
        a("s_memtime s[70:71]")
        for i in range(1, NSTAMP):
            a(f"s_mov_b32 s{70+2*i}, 0")
    a("s_load_dwordx16 s[16:31], s[0:1], 0")
    a("s_load_dwordx4 s[32:35], s[0:1], 64")
    a("s_load_dwordx2 s[36:37], s[0:1], 80")
    a("v_lshrrev_b32 v1, 6, v0")
    a("v_and_b32 v0, 63, v0")
    a("s_nop 0")
    a("v_readfirstlane_b32 s3, v1")


S_EPOCH = 91
def nonce_issue(a):
    a(f"s_add_u32 s6, s{P_WS}, 0x{EPOCH:x}")
    a(f"s_addc_u32 s7, s{P_WS+1}, 0")
    a(f"s_load_dword s{S_EPOCH}, s[6:7], 0")


def nonce_get(a):
    a("s_waitcnt lgkmcnt(0)")
    a(f"s_add_u32 s{S_NONCE}, s{S_EPOCH}, 1")


load_nonce = None


def publish(a, idx_sreg, base, srd):
    L = a.uid("pub")
    nonce_get(a)
    a("s_waitcnt vmcnt(0)")
    a("s_barrier")
    a(f"s_cmp_lg_u32 s{S_W}, 0")
    a(f"s_cbranch_scc1 {L}")
    a(f"s_lshl_b32 s60, s{idx_sreg}, 7")
    a(f"s_add_u32 s60, s60, 0x{base:x}")
    a(f"v_mov_b32 v8, s{S_NONCE}")
    a("v_mov_b32 v9, 0")
    a("s_mov_b64 exec, 1")
    a(f"buffer_store_dword v8, v9, s[{srd}:{srd+3}], s60 offen sc0 sc1")
    a("s_mov_b64 exec, -1")
    a.label(L)


def wait_flags(a, vaddr, nlanes, srd, first_lane=0):
    L, L1, L2, Ld = a.uid("wf"), a.uid("wf1"), a.uid("wf2"), a.uid("wfd")
    mask = (1 << nlanes) - 1
    nonce_get(a)
    a(f"s_cmp_lg_u32 s{S_W}, 0")
    a(f"s_cbranch_scc1 {Ld}")
    a("s_mov_b32 s60, 0")
    a(f"s_mov_b32 s62, 0x{mask & 0xffffffff:x}")
    a(f"s_mov_b32 s63, 0x{mask >> 32:x}")
    a(f"s_mov_b64 exec, {1 << first_lane}" if first_lane < 6 else "s_mov_b64 exec, 1")
    a.label(L1)
    a(f"buffer_load_dword v8, v{vaddr}, s[{srd}:{srd+3}], 0 offen sc0 sc1")
    a("s_waitcnt vmcnt(0)")
    a(f"v_cmp_eq_u32 vcc, s{S_NONCE}, v8")
    a("s_cmp_lg_u64 vcc, 0")
    a(f"s_cbranch_scc1 {L2}")
    a("s_add_u32 s60, s60, 1")
    a(f"s_cmp_lt_u32 s60, {SPIN_MAX}")
    a(f"s_cbranch_scc0 {L2}")
    a("s_sleep 2")
    a(f"s_branch {L1}")
    a.label(L2)
    a("s_mov_b64 exec, s[62:63]")
    a.label(L)
    a(f"buffer_load_dword v8, v{vaddr}, s[{srd}:{srd+3}], 0 offen sc0 sc1")
    a("s_waitcnt vmcnt(0)")
    a(f"v_cmp_eq_u32 vcc, s{S_NONCE}, v8")
    a("s_cmp_eq_u64 vcc, s[62:63]")
    a(f"s_cbranch_scc1 {Ld}_x")
    a("s_add_u32 s60, s60, 1")
    a(f"s_cmp_lt_u32 s60, {SPIN_MAX}")
    a(f"s_cbranch_scc0 {Ld}_x")
    a(f"s_branch {L}")
    a.label(Ld + "_x")
    a("s_mov_b64 exec, -1")
    a.label(Ld)
    a("s_barrier")


def mk_srd(a, srd, ptr, nbytes, off=0):
    if off:
        a(f"s_add_u32 s{srd}, s{ptr}, 0x{off:x}")
        a(f"s_addc_u32 s{srd+1}, s{ptr+1}, 0")
    else:
        a(f"s_mov_b32 s{srd}, s{ptr}")
        a(f"s_mov_b32 s{srd+1}, s{ptr+1}")
    a(f"s_mov_b32 s{srd+2}, 0x{nbytes:x}")
    a(f"s_mov_b32 s{srd+3}, 0x20000")


def dma(a, voff, srd, sbase, soff_imm, lds_sbase, lds_imm, tmp=60, mods=""):
    a(f"s_add_u32 m0, s{lds_sbase}, 0x{lds_imm:x}")
    a(f"s_add_u32 s{tmp}, s{sbase}, 0x{soff_imm:x}")
    a(f"buffer_load_dwordx4 v{voff}, s[{srd}:{srd+3}], s{tmp} offen {mods} lds".replace("  ", " "))


def x_dma_voffset(a, vdst, t0, t1):
    a(f"s_and_b32 s60, s{S_W}, 1")
    a(f"s_lshl_b32 s60, s60, 2")
    a(f"v_lshrrev_b32 v{t0}, 4, v0")
    a(f"v_add_u32 v{t0}, s60, v{t0}")
    a(f"v_and_b32 v{t1}, 7, v0")
    a(f"v_xor_b32 v{t0}, v{t0}, v{t1}")
    a(f"v_lshlrev_b32 v{t0}, 4, v{t0}")
    a(f"v_lshrrev_b32 v{t1}, 3, v0")
    a(f"v_lshlrev_b32 v{t1}, 10, v{t1}")
    a(f"v_add_u32 v{vdst}, v{t0}, v{t1}")


def w256_dma_voffset(a, vdst, rowstride, t0, t1):
    a(f"v_lshrrev_b32 v{t0}, 4, v0")
    a(f"v_bfe_u32 v{t1}, v0, 2, 2")
    a(f"v_xor_b32 v{t1}, v{t1}, v{t0}")
    a(f"v_lshlrev_b32 v{t1}, 6, v{t1}")
    a(f"v_mul_u32_u24 v{t0}, {rowstride}, v{t0}")
    a(f"v_add_u32 v{t0}, v{t0}, v{t1}")
    a(f"v_and_b32 v{t1}, 3, v0")
    a(f"v_lshlrev_b32 v{t1}, 4, v{t1}")
    a(f"v_add_u32 v{vdst}, v{t0}, v{t1}")


def x_frag_addrs(a, vbase, wr_sreg, t0, t1):
    a(f"v_and_b32 v{t0}, 31, v0")
    a(f"v_bfe_u32 v{t1}, v0, 1, 3")
    a(f"v_lshrrev_b32 v{vbase}, 5, v0")
    a(f"v_xor_b32 v{t1}, v{t1}, v{vbase}")
    a(f"v_lshlrev_b32 v{t1}, 4, v{t1}")
    a(f"v_lshlrev_b32 v{t0}, 7, v{t0}")
    a(f"v_add_u32 v{t0}, v{t0}, v{t1}")
    a(f"s_lshl_b32 s60, s{wr_sreg}, 13")
    a(f"v_add_u32 v{vbase}, s60, v{t0}")
    for s in range(1, 4):
        a(f"v_xor_b32 v{vbase+s}, {32*s}, v{vbase}")


def w256_frag_addr(a, vdst, wc_sreg, region, t0, t1, t2):
    a(f"v_bfe_u32 v{t0}, v0, 2, 2")
    a(f"v_lshrrev_b32 v{t1}, 5, v0")
    a(f"v_lshlrev_b32 v{t1}, 3, v{t1}")
    a(f"v_add_u32 v{t1}, v{t1}, v{t0}")
    a(f"v_lshlrev_b32 v{t1}, 8, v{t1}")
    a(f"v_xor_b32 v{t0}, s{wc_sreg}, v{t0}")
    a(f"v_lshlrev_b32 v{t0}, 6, v{t0}")
    a(f"v_add_u32 v{t1}, v{t1}, v{t0}")
    a(f"v_bfe_u32 v{t0}, v0, 4, 1")
    a(f"v_lshlrev_b32 v{t0}, 5, v{t0}")
    a(f"v_and_b32 v{t2}, 3, v0")
    a(f"v_lshlrev_b32 v{t2}, 3, v{t2}")
    a(f"v_add3_u32 v{t1}, v{t1}, v{t0}, v{t2}")
    a(f"v_add_u32 v{vdst}, 0x{region:x}, v{t1}")


def role_g1(a, task, pfx, end_label):
    RT, CT, WR, WC = 38, 39, 56, 57
    XS, WS_, LB = 58, 59, 61
    vXo, vWo, vXa, vWa = 1, 2, 3, 7
    FX = [8, 20]
    FW = [16, 28]
    ACC = 32
    XREG, WREG = 0, 49152
    a.c("---- G1: QKV tile ----")
    a(f"s_and_b32 s62, s{task}, 7")
    a(f"s_lshr_b32 s63, s{task}, 3")
    a(f"s_lshr_b32 s{RT}, s62, 1")
    a(f"s_lshl_b32 s{RT}, s{RT}, 2")
    a(f"s_and_b32 s60, s63, 3")
    a(f"s_add_u32 s{RT}, s{RT}, s60")
    a(f"s_and_b32 s{CT}, s62, 1")
    a(f"s_mul_i32 s{CT}, s{CT}, 6")
    a(f"s_lshr_b32 s60, s63, 2")
    a(f"s_add_u32 s{CT}, s{CT}, s60")
    a(f"s_lshr_b32 s{WR}, s{S_W}, 2")
    a(f"s_and_b32 s{WC}, s{S_W}, 3")
    x_dma_voffset(a, vXo, 8, 9)
    w256_dma_voffset(a, vWo, 3072, 8, 9)
    x_frag_addrs(a, vXa, WR, 8, 9)
    w256_frag_addr(a, vWa, WC, WREG, 8, 9, 10)
    a(f"s_lshl_b32 s{XS}, s{RT}, 7")
    a(f"s_lshl_b32 s60, s{S_W}, 3")
    a(f"s_add_u32 s{XS}, s{XS}, s60")
    a(f"s_lshl_b32 s{XS}, s{XS}, 10")
    a(f"s_mul_i32 s{WS_}, s{S_W}, {4*3072}")
    a(f"s_lshl_b32 s60, s{CT}, 8")
    a(f"s_add_u32 s{WS_}, s{WS_}, s60")
    a(f"s_lshl_b32 s{LB}, s{S_W}, 10")
    a("s_waitcnt lgkmcnt(0)")
    mk_srd(a, SRD0, P_AX, 2048 * 1024)
    mk_srd(a, SRD1, P_WQKV, 512 * 3072)
    mk_srd(a, SRD2, P_WS, WS_BYTES)

    def xdma(j):
        slot = j % 3
        dma(a, vXo, SRD0, XS, j * 128, LB, XREG + slot * 16384)
        dma(a, vXo, SRD0, XS, j * 128 + 65536, LB, XREG + slot * 16384 + 8192)

    def wdma(j):
        slot = j % 2
        dma(a, vWo, SRD1, WS_, j * 64 * 3072, LB, WREG + slot * 16384)
        dma(a, vWo, SRD1, WS_, j * 64 * 3072 + 32 * 3072, LB, WREG + slot * 16384 + 8192)

    def reads(j, s, buf):
        xs, wsl = (j % 3) * 16384, (j % 2) * 16384
        for tt in range(2):
            a(f"ds_read_b128 {vr(FX[buf]+4*tt,4)}, v{vXa+s} offset:{xs + tt*4096}")
        a(f"ds_read_b64_tr_b16 {vr(FW[buf],2)}, v{vWa} offset:{wsl + s*4096}")
        a(f"ds_read_b64_tr_b16 {vr(FW[buf]+2,2)}, v{vWa} offset:{wsl + s*4096 + 1024}")

    def mainloop(vtype):
        stamp(a, 1)
        vm = VmTracker()
        xdma(0); vm.issue("X0", 2)
        wdma(0); vm.issue("W0", 2)
        xdma(1); vm.issue("X1", 2)
        wdma(1); vm.issue("W1", 2)
        xdma(2); vm.issue("X2", 2)
        for i in range(32):
            a(f"v_mov_b32 v{ACC+i}, 0")
        a(f"s_waitcnt vmcnt({vm.wait_for(['X0','W0'])})")
        a("s_barrier")
        stamp(a, 2)
        reads(0, 0, 0)
        buf = 0
        for j in range(8):
            for s in range(4):
                if s < 3:
                    reads(j, s + 1, buf ^ 1)
                    a("s_waitcnt lgkmcnt(4)")
                else:
                    a("s_waitcnt lgkmcnt(0)")
                    if j < 7:
                        a(f"s_waitcnt vmcnt({vm.wait_for([f'X{j+1}', f'W{j+1}'])})")
                        a("s_barrier")
                        if j + 2 < 8:
                            wdma(j + 2); vm.issue(f"W{j+2}", 2)
                        if j + 3 < 8:
                            xdma(j + 3); vm.issue(f"X{j+3}", 2)
                        reads(j + 1, 0, buf ^ 1)
                for tt in range(2):
                    acc = vr(ACC + 16 * tt, 16)
                    if vtype:
                        a(f"v_mfma_f32_32x32x16_bf16 {acc}, {vr(FX[buf]+4*tt,4)}, {vr(FW[buf],4)}, {acc}")
                    else:
                        a(f"v_mfma_f32_32x32x16_bf16 {acc}, {vr(FW[buf],4)}, {vr(FX[buf]+4*tt,4)}, {acc}")
                buf ^= 1

    Lv = f"{pfx}_v"
    a(f"s_cmp_ge_u32 s{CT}, 8")
    a(f"s_cbranch_scc1 {Lv}")
    mainloop(False)
    stamp(a, 3)
    a(f"s_and_b32 s60, s{CT}, 3")
    a(f"s_lshl_b32 s60, s60, 3")
    a(f"s_lshl_b32 s62, s{WC}, 1")
    a(f"s_add_u32 s60, s60, s62")
    a(f"s_lshl_b32 s60, s60, 16")
    a(f"s_lshl_b32 s62, s{RT}, 2")
    a(f"s_lshl_b32 s63, s{WR}, 1")
    a(f"s_add_u32 s62, s62, s63")
    a(f"s_lshl_b32 s62, s62, 10")
    a(f"s_add_u32 s60, s60, s62")
    a(f"v_lshlrev_b32 v1, 4, v0")
    a(f"s_cmp_lt_u32 s{CT}, 4")
    a(f"s_cselect_b32 s62, 0x{QSCALE:x}, 1.0")
    a(f"s_cbranch_scc1 {pfx}_isq")
    a(f"s_add_u32 s60, s60, 0x{KF:x}")
    a("v_and_b32 v2, 0x33, v0")
    a("v_bfe_u32 v3, v0, 2, 1")
    a("v_lshlrev_b32 v3, 3, v3")
    a("v_bfe_u32 v4, v0, 3, 1")
    a("v_lshlrev_b32 v4, 2, v4")
    a("v_or3_b32 v2, v2, v3, v4")
    a("v_lshlrev_b32 v1, 4, v2")
    a.label(f"{pfx}_isq")
    a("s_nop 7")
    a("s_nop 7")
    for tt in range(2):
        for i in range(16):
            a(f"v_mul_f32 v{ACC+16*tt+i}, s62, v{ACC+16*tt+i}")
        for hh in range(2):
            d = 8 + 4 * (2 * tt + hh)
            for i in range(4):
                r = ACC + 16 * tt + 8 * hh + 2 * i
                a(f"v_cvt_pk_bf16_f32 v{d+i}, v{r}, v{r+1}")
            a(f"s_add_u32 s63, s60, {hh*65536 + tt*1024}")
            a(f"buffer_store_dwordx4 {vr(d,4)}, v1, s[{SRD2}:{SRD2+3}], s63 offen {ST_MODS}")
    a(f"s_branch {end_label}")
    a.label(Lv)
    mainloop(True)
    stamp(a, 3)
    a(f"s_and_b32 s60, s{CT}, 3")
    a(f"s_lshl_b32 s60, s60, 3")
    a(f"s_lshl_b32 s62, s{WC}, 1")
    a(f"s_add_u32 s60, s60, s62")
    a(f"s_lshl_b32 s60, s60, 16")
    a(f"s_lshl_b32 s62, s{RT}, 2")
    a(f"s_lshl_b32 s63, s{WR}, 1")
    a(f"s_add_u32 s62, s62, s63")
    a(f"s_lshl_b32 s62, s62, 10")
    a(f"s_add_u32 s60, s60, s62")
    a(f"s_add_u32 s60, s60, 0x{VF:x}")
    a("v_bfe_u32 v2, v0, 4, 1")
    a("v_lshlrev_b32 v2, 16, v2")
    a("v_lshrrev_b32 v3, 5, v0")
    a("v_lshlrev_b32 v3, 8, v3")
    a("v_and_b32 v4, 15, v0")
    a("v_lshlrev_b32 v4, 4, v4")
    a("v_add3_u32 v1, v2, v3, v4")
    a("s_nop 7")
    a("s_nop 7")
    for tt in range(2):
        for jj in range(2):
            d = 8 + 4 * (2 * tt + jj)
            for i in range(4):
                r = ACC + 16 * tt + 8 * jj + 2 * i
                a(f"v_cvt_pk_bf16_f32 v{d+i}, v{r}, v{r+1}")
            a(f"s_add_u32 s63, s60, {tt*1024 + jj*512}")
            a(f"buffer_store_dwordx4 {vr(d,4)}, v1, s[{SRD2}:{SRD2+3}], s63 offen {ST_MODS}")
    a(f"s_branch {end_label}")


def role_gate(a, task, pfx, end_label):
    a.c("---- gate ----")
    a("s_waitcnt lgkmcnt(0)")
    mk_srd(a, SRD0, P_AX, 2048 * 1024)
    mk_srd(a, SRD1, P_GW, 1024)
    mk_srd(a, SRD2, P_WS, WS_BYTES)
    a(f"s_lshl_b32 s60, s{task}, 5")
    a(f"s_lshl_b32 s61, s{S_W}, 2")
    a(f"s_add_u32 s60, s60, s61")
    a(f"s_lshl_b32 s61, s60, 10")
    a("v_lshlrev_b32 v1, 4, v0")
    a(f"buffer_load_dwordx4 v[4:7], v1, s[{SRD1}:{SRD1+3}], 0 offen")
    for r in range(4):
        a(f"s_add_u32 s62, s61, {r*1024}")
        a(f"buffer_load_dwordx4 v[{8+4*r}:{11+4*r}], v1, s[{SRD0}:{SRD0+3}], s62 offen")
    a("s_waitcnt vmcnt(0)")
    for r in range(4):
        a(f"v_mov_b32 v{28+r}, 0")
    for i in range(4):
        for r in range(4):
            a(f"v_dot2_f32_bf16 v{28+r}, v{8+4*r+i}, v{4+i}, v{28+r}")
    a("s_nop 2")
    for sh in ("row_shr:1", "row_shr:2", "row_shr:4", "row_shr:8"):
        for r in range(4):
            a(f"v_add_f32_dpp v{28+r}, v{28+r}, v{28+r} {sh} row_mask:0xf bank_mask:0xf bound_ctrl:0")
        a("s_nop 1")
    for r in range(4):
        a(f"v_add_f32_dpp v{28+r}, v{28+r}, v{28+r} row_bcast:15 row_mask:0xa bank_mask:0xf")
    a("s_nop 1")
    for r in range(4):
        a(f"v_add_f32_dpp v{28+r}, v{28+r}, v{28+r} row_bcast:31 row_mask:0xc bank_mask:0xf")
    a("s_nop 1")
    for r in range(4):
        a(f"v_mul_f32 v{28+r}, 0xbfb8aa3b, v{28+r}")
    for r in range(4):
        a(f"v_exp_f32 v{28+r}, v{28+r}")
    a("s_nop 0")
    for r in range(4):
        a(f"v_add_f32 v{28+r}, 1.0, v{28+r}")
    for r in range(4):
        a(f"v_rcp_f32 v{28+r}, v{28+r}")
    a("s_nop 0")
    a("v_cmp_eq_u32 vcc, 63, v0")
    a("s_and_saveexec_b64 s[62:63], vcc")
    a(f"s_lshl_b32 s61, s60, 2")
    a(f"s_add_u32 s61, s61, 0x{GV:x}")
    a("v_mov_b32 v1, 0")
    a(f"buffer_store_dwordx4 v[28:31], v1, s[{SRD2}:{SRD2+3}], s61 offen {ST_MODS}")
    a(f"s_branch {end_label}")


def role_g2(a, task, pfx, end_label):
    RT, CT, WR, WC = 38, 39, 56, 57
    XS, WS_, LB = 58, 59, 61
    vXo, vWo, vXa, vWa = 1, 2, 3, 7
    FX = [8, 24]
    FG = [16, 32]
    FU = [20, 36]
    AG, AU = 40, 72
    XREG, WREG = 0, 32768
    a.c("---- G2: gate/up tile ----")
    a(f"s_and_b32 s62, s{task}, 7")
    a(f"s_lshr_b32 s63, s{task}, 3")
    a(f"s_and_b32 s60, s62, 1")
    a(f"s_mul_i32 s60, s60, 22")
    a(f"s_add_u32 s63, s63, s60")
    a(f"s_lshr_b32 s{CT}, s63, 2")
    a(f"s_lshr_b32 s{RT}, s62, 1")
    a(f"s_lshl_b32 s{RT}, s{RT}, 2")
    a(f"s_and_b32 s60, s63, 3")
    a(f"s_add_u32 s{RT}, s{RT}, s60")
    a(f"s_lshr_b32 s{WR}, s{S_W}, 2")
    a(f"s_and_b32 s{WC}, s{S_W}, 3")
    x_dma_voffset(a, vXo, 8, 9)
    w256_dma_voffset(a, vWo, 2752, 8, 9)
    x_frag_addrs(a, vXa, WR, 8, 9)
    w256_frag_addr(a, vWa, WC, WREG, 8, 9, 10)
    a(f"s_lshl_b32 s{XS}, s{RT}, 7")
    a(f"s_lshl_b32 s60, s{S_W}, 3")
    a(f"s_add_u32 s{XS}, s{XS}, s60")
    a(f"s_lshl_b32 s{XS}, s{XS}, 10")
    a(f"s_mul_i32 s{WS_}, s{S_W}, {4*2752}")
    a(f"s_lshl_b32 s60, s{CT}, 8")
    a(f"s_add_u32 s{WS_}, s{WS_}, s60")
    a(f"s_lshl_b32 s{LB}, s{S_W}, 10")
    a("s_waitcnt lgkmcnt(0)")
    mk_srd(a, SRD0, P_AX, 2048 * 1024)
    mk_srd(a, SRD1, P_WG, 512 * 2752)
    mk_srd(a, SRD3, P_WU, 512 * 2752)
    mk_srd(a, SRD2, P_WS, WS_BYTES)

    def xdma(j):
        slot = j % 2
        dma(a, vXo, SRD0, XS, j * 128, LB, XREG + slot * 16384)
        dma(a, vXo, SRD0, XS, j * 128 + 65536, LB, XREG + slot * 16384 + 8192)

    def wdma(u):
        slot = u % 3
        dma(a, vWo, SRD1, WS_, u * 32 * 2752, LB, WREG + slot * 16384)
        dma(a, vWo, SRD3, WS_, u * 32 * 2752, LB, WREG + slot * 16384 + 8192)

    def reads(u, s, buf):
        xs, wsl = ((u >> 1) % 2) * 16384, (u % 3) * 16384
        sx = 2 * (u & 1) + s
        for tt in range(2):
            a(f"ds_read_b128 {vr(FX[buf]+4*tt,4)}, v{vXa+sx} offset:{xs + tt*4096}")
        for F, mo in ((FG, 0), (FU, 8192)):
            a(f"ds_read_b64_tr_b16 {vr(F[buf],2)}, v{vWa} offset:{wsl + mo + s*4096}")
            a(f"ds_read_b64_tr_b16 {vr(F[buf]+2,2)}, v{vWa} offset:{wsl + mo + s*4096 + 1024}")

    stamp(a, 1)
    vm = VmTracker()
    xdma(0); vm.issue("X0", 2)
    wdma(0); vm.issue("W0", 2)
    wdma(1); vm.issue("W1", 2)
    xdma(1); vm.issue("X1", 2)
    wdma(2); vm.issue("W2", 2)
    for i in range(64):
        a(f"v_mov_b32 v{AG+i}, 0")
    a(f"s_waitcnt vmcnt({vm.wait_for(['X0','W0'])})")
    a("s_barrier")
    stamp(a, 2)
    reads(0, 0, 0)
    buf = 0
    for u in range(16):
        for s in range(2):
            if s == 0:
                reads(u, 1, buf ^ 1)
                a("s_waitcnt lgkmcnt(6)")
            else:
                a("s_waitcnt lgkmcnt(0)")
                if u < 15:
                    a(f"s_waitcnt vmcnt({vm.wait_for([f'W{u+1}', f'X{(u+1)>>1}'])})")
                    a("s_barrier")
                    if u + 3 < 16:
                        wdma(u + 3); vm.issue(f"W{u+3}", 2)
                    if (u & 1) and (u >> 1) + 2 < 8:
                        xdma((u >> 1) + 2); vm.issue(f"X{(u>>1)+2}", 2)
                    reads(u + 1, 0, buf ^ 1)
            for tt in range(2):
                ag, au = vr(AG + 16 * tt, 16), vr(AU + 16 * tt, 16)
                a(f"v_mfma_f32_32x32x16_bf16 {ag}, {vr(FG[buf],4)}, {vr(FX[buf]+4*tt,4)}, {ag}")
                a(f"v_mfma_f32_32x32x16_bf16 {au}, {vr(FU[buf],4)}, {vr(FX[buf]+4*tt,4)}, {au}")
            buf ^= 1
    stamp(a, 3)
    a(f"s_lshl_b32 s62, s{RT}, 2")
    a(f"s_lshl_b32 s63, s{WR}, 1")
    a(f"s_add_u32 s62, s62, s63")
    a(f"s_mul_i32 s62, s62, {HSTEPS}")
    a(f"s_lshl_b32 s60, s{CT}, 3")
    a(f"s_lshl_b32 s63, s{WC}, 1")
    a(f"s_add_u32 s60, s60, s63")
    a(f"s_cmp_ge_u32 s60, 86")
    a(f"s_cselect_b32 s64, 0, 1.0")
    a(f"s_add_u32 s60, s60, s62")
    a(f"s_lshl_b32 s60, s60, 10")
    a(f"s_add_u32 s60, s60, 0x{HF:x}")
    a("v_lshlrev_b32 v1, 4, v0")
    a("s_nop 7")
    a("s_nop 7")
    T = 8
    for tt in range(2):
        for hh in range(2):
            g0, u0 = AG + 16 * tt + 8 * hh, AU + 16 * tt + 8 * hh
            for i in range(8):
                a(f"v_mul_f32 v{T+i}, 0xbfb8aa3b, v{g0+i}")
            for i in range(8):
                a(f"v_exp_f32 v{T+i}, v{T+i}")
            for i in range(8):
                a(f"v_mul_f32 v{u0+i}, v{g0+i}, v{u0+i}")
            for i in range(8):
                a(f"v_add_f32 v{T+i}, 1.0, v{T+i}")
            for i in range(8):
                a(f"v_rcp_f32 v{T+i}, v{T+i}")
            for i in range(8):
                a(f"v_mul_f32 v{u0+i}, s64, v{u0+i}")
            for i in range(8):
                a(f"v_mul_f32 v{u0+i}, v{u0+i}, v{T+i}")
            d = 16 + 4 * (2 * tt + hh)
            for i in range(4):
                a(f"v_cvt_pk_bf16_f32 v{d+i}, v{u0+2*i}, v{u0+2*i+1}")
            a(f"s_add_u32 s63, s60, {tt*HSTEPS*1024 + hh*1024}")
            a(f"buffer_store_dwordx4 {vr(d,4)}, v1, s[{SRD2}:{SRD2+3}], s63 offen {ST_MODS}")
    a(f"s_branch {end_label}")


def role_attn(a, task, pfx, end_label):
    H, QB, QG, KH, ST = 38, 39, 56, 57, 58
    GS, LB = 59, 61
    MSK = 64
    vKa, vVa, vDo = 1, 2, 3
    SA, SB, OA, OB = 16, 32, 48, 64
    QA, QBf = 80, 84
    KB = [88, 92]
    VB = [96, 104]
    IDX = 112
    a.c("---- attention ----")
    a(f"s_and_b32 s62, s{task}, 7")
    a(f"s_lshr_b32 s63, s{task}, 3")
    a(f"s_lshl_b32 s{H}, s62, 2")
    a(f"s_lshr_b32 s60, s63, 3")
    a(f"s_add_u32 s{H}, s{H}, s60")
    a(f"s_and_b32 s{QB}, s63, 7")
    a(f"s_and_b32 s{QG}, s{S_W}, 3")
    a(f"s_lshr_b32 s{KH}, s{S_W}, 2")
    a(f"s_lshl_b32 s{GS}, s{H}, 16")
    a(f"s_lshl_b32 s60, s{KH}, 15")
    a(f"s_add_u32 s{GS}, s{GS}, s60")
    a(f"s_lshl_b32 s60, s{QG}, 10")
    a(f"s_add_u32 s{GS}, s{GS}, s60")
    a(f"s_lshl_b32 s{LB}, s{KH}, 13")
    a(f"s_add_u32 s{LB}, s{LB}, s60")
    a(f"v_lshlrev_b32 v{vDo}, 4, v0")
    a(f"s_lshl_b32 s60, s{KH}, 13")
    a(f"v_add_u32 v{vKa}, s60, v{vDo}")
    a(f"v_lshrrev_b32 v4, 5, v0")
    a(f"v_lshlrev_b32 v4, 8, v4")
    a(f"v_and_b32 v5, 15, v0")
    a(f"v_lshlrev_b32 v5, 4, v5")
    a(f"s_add_u32 s60, s60, 4096")
    a(f"v_add3_u32 v{vVa}, v4, v5, s60")
    a(f"s_mov_b32 s{MSK}, 0x0000ffff")
    a(f"s_mov_b32 s{MSK+1}, 0x0000ffff")
    a("s_waitcnt lgkmcnt(0)")
    mk_srd(a, SRD2, P_WS, WS_BYTES)

    def kvdma(st_imm=None, slot=None, dyn=False):
        if not dyn:
            dma(a, vDo, SRD2, GS, KF + st_imm * 4096, LB, slot * 16384)
            dma(a, vDo, SRD2, GS, VF + st_imm * 4096, LB, slot * 16384 + 4096)

    stamp(a, 1)
    a(f"s_lshl_b32 s60, s{H}, 6")
    a(f"s_lshl_b32 s62, s{QB}, 3")
    a(f"s_add_u32 s60, s60, s62")
    a(f"s_lshl_b32 s62, s{QG}, 1")
    a(f"s_add_u32 s60, s60, s62")
    a(f"s_lshl_b32 s60, s60, 10")
    a(f"s_add_u32 s62, s60, 1024")
    a(f"buffer_load_dwordx4 {vr(QA,4)}, v{vDo}, s[{SRD2}:{SRD2+3}], s60 offen")
    a(f"buffer_load_dwordx4 {vr(QBf,4)}, v{vDo}, s[{SRD2}:{SRD2+3}], s62 offen")
    for st in range(3):
        kvdma(st, st)
    for i in range(16):
        a(f"v_mov_b32 v{OA+i}, 0")
        a(f"v_mov_b32 v{OB+i}, 0")
        a(f"v_mov_b32 v{SB+i}, 0")
    a(f"v_mov_b32 v{IDX}, 0xdddddddd")
    a("v_and_b32 v4, 16, v0")
    a("v_cmp_ne_u32 vcc, 0, v4")
    a("v_mov_b32 v5, 0x3f803f80")
    a("s_nop 1")
    for i in range(16):
        a(f"v_cndmask_b32 v{VB[0]+i}, 0, v5, vcc")
    NXT, SLOT = 66, 67
    a(f"s_add_u32 s{NXT}, s{GS}, {3*4096}")
    a(f"s_mov_b32 s{SLOT}, {3*16384}")
    a(f"s_mov_b32 s{ST}, 0")
    a("s_waitcnt vmcnt(4)")
    a("s_barrier")
    stamp(a, 2)

    def kread(buf, off):
        a(f"ds_read_b128 {vr(KB[buf],4)}, v{vKa} offset:{off}")

    def vread(buf, off):
        a(f"s_mov_b64 exec, s[{MSK}:{MSK+1}]")
        a(f"ds_read_b128 {vr(VB[buf],4)}, v{vVa} offset:{off}")
        a(f"ds_read_b128 {vr(VB[buf]+4,4)}, v{vVa} offset:{off+512}")
        a("s_mov_b64 exec, -1")

    kread(0, 0)
    vread(0, 0)
    a("s_waitcnt lgkmcnt(0)")
    a(f"v_mfma_f32_32x32x16_bf16 {vr(SA,16)}, {vr(KB[0],4)}, {vr(QA,4)}, 0")
    a("s_nop 7")
    a("s_nop 7")
    Lloop = f"{pfx}_loop"
    a(".p2align 6")
    a.label(Lloop)
    for b in range(4):
        cur, nxt = b & 1, (b & 1) ^ 1
        exA = [f"v_exp_f32 v{SA+i}, v{SA+i}" for i in range(16)]
        exB = [f"v_exp_f32 v{SB+i}, v{SB+i}" for i in range(16)]
        if b == 3:
            Lt, Lj = a.uid(pfx + "_t"), a.uid(pfx + "_j")
            a(f"s_cmp_lt_u32 s{ST}, 5")
            a(f"s_cbranch_scc0 {Lt}")
            a("s_waitcnt vmcnt(2)")
            a("s_barrier")
            a(f"s_add_u32 m0, s{LB}, s{SLOT}")
            a(f"s_add_u32 s60, s{NXT}, 0x{KF:x}")
            a(f"buffer_load_dwordx4 v{vDo}, s[{SRD2}:{SRD2+3}], s60 offen lds")
            a(f"s_add_u32 m0, m0, 4096")
            a(f"s_add_u32 s60, s{NXT}, 0x{VF:x}")
            a(f"buffer_load_dwordx4 v{vDo}, s[{SRD2}:{SRD2+3}], s60 offen lds")
            a(f"s_add_u32 s{NXT}, s{NXT}, 4096")
            a(f"s_add_u32 s{SLOT}, s{SLOT}, 16384")
            a(f"s_and_b32 s{SLOT}, s{SLOT}, 0xffff")
            a(f"s_branch {Lj}")
            a.label(Lt)
            a("s_waitcnt vmcnt(0)")
            a("s_barrier")
            a.label(Lj)
            a(f"v_add_u32 v{vKa}, 16384, v{vKa}")
            a(f"v_add_u32 v{vVa}, 16384, v{vVa}")
            a(f"v_and_b32 v{vKa}, 0xffff, v{vKa}")
            a(f"v_and_b32 v{vVa}, 0xffff, v{vVa}")
            noff = 0
        else:
            noff = (b + 1) * 1024
        a(exA[0])
        kread(nxt, noff)
        a(f"v_smfmac_f32_32x32x32_bf16 {vr(OB,16)}, {vr(VB[nxt],4)}, {vr(SB,8)}, v{IDX}")
        for e in exA[1:4]:
            a(e)
        a(f"v_smfmac_f32_32x32x32_bf16 {vr(OB,16)}, {vr(VB[nxt]+4,4)}, {vr(SB+8,8)}, v{IDX}")
        for e in exA[4:7]:
            a(e)
        a(f"v_mfma_f32_32x32x16_bf16 {vr(SB,16)}, {vr(KB[cur],4)}, {vr(QBf,4)}, 0")
        vread(nxt, noff)
        for e in exA[7:16]:
            a(e)
        a("s_waitcnt lgkmcnt(2)")
        a(exB[0])
        a(f"v_smfmac_f32_32x32x32_bf16 {vr(OA,16)}, {vr(VB[cur],4)}, {vr(SA,8)}, v{IDX}")
        for e in exB[1:4]:
            a(e)
        a(f"v_smfmac_f32_32x32x32_bf16 {vr(OA,16)}, {vr(VB[cur]+4,4)}, {vr(SA+8,8)}, v{IDX}")
        for e in exB[4:7]:
            a(e)
        a(f"v_mfma_f32_32x32x16_bf16 {vr(SA,16)}, {vr(KB[nxt],4)}, {vr(QA,4)}, 0")
        for e in exB[7:16]:
            a(e)
    a(f"s_add_u32 s{ST}, s{ST}, 1")
    a(f"s_cmp_lt_u32 s{ST}, 8")
    a(f"s_cbranch_scc1 {Lloop}")
    stamp(a, 3)
    a(f"v_smfmac_f32_32x32x32_bf16 {vr(OB,16)}, {vr(VB[1],4)}, {vr(SB,8)}, v{IDX}")
    a(f"v_smfmac_f32_32x32x32_bf16 {vr(OB,16)}, {vr(VB[1]+4,4)}, {vr(SB+8,8)}, v{IDX}")
    a("s_waitcnt lgkmcnt(0)")
    a("s_barrier")
    a(f"s_mul_i32 s60, s{QG}, {2*64*48}")
    a("v_mul_u32_u24 v4, 48, v0")
    a("v_add_u32 v4, s60, v4")
    a("s_nop 7")
    a("s_nop 7")
    Lw = f"{pfx}_kh1"
    a(f"s_cmp_eq_u32 s{KH}, 0")
    a(f"s_cbranch_scc1 {Lw}")
    for t, O in enumerate((OA, OB)):
        for q in range(3):
            a(f"ds_write_b128 v4, {vr(O+4*q,4)} offset:{t*3072 + q*16}")
    a("s_waitcnt lgkmcnt(0)")
    a("s_barrier")
    a(f"s_branch {end_label}")
    a.label(Lw)
    a("s_barrier")
    for t in range(2):
        for q in range(3):
            a(f"ds_read_b128 {vr(80+12*t+4*q,4)}, v4 offset:{t*3072 + q*16}")
    a("s_waitcnt lgkmcnt(0)")
    for t, O in enumerate((OA, OB)):
        for i in range(9):
            a(f"v_add_f32 v{O+i}, v{O+i}, v{80+12*t+i}")
    for t, O in enumerate((OA, OB)):
        a(f"v_rcp_f32 v{O+8}, v{O+8}")
    a("s_nop 0")
    a(f"s_lshl_b32 s60, s{QB}, 3")
    a(f"s_lshl_b32 s62, s{QG}, 1")
    a(f"s_add_u32 s60, s60, s62")
    a(f"s_lshl_b32 s60, s60, 5")
    a(f"s_add_u32 s60, s60, s{H}")
    a(f"s_lshl_b32 s60, s60, 10")
    a(f"s_add_u32 s60, s60, 0x{OF:x}")
    for t, O in enumerate((OA, OB)):
        for i in range(8):
            a(f"v_mul_f32 v{O+i}, v{O+i}, v{O+8}")
        for i in range(4):
            a(f"v_cvt_pk_bf16_f32 v{80+4*t+i}, v{O+2*i}, v{O+2*i+1}")
        a(f"s_add_u32 s62, s60, {t*32*1024}")
        a(f"buffer_store_dwordx4 {vr(80+4*t,4)}, v{vDo}, s[{SRD2}:{SRD2+3}], s62 offen {ST_MODS}")
    a(f"s_branch {end_label}")


def role_g3(a, task, pfx, end_label):
    RT, CT, TR, TC, KHh = 38, 39, 56, 57, 58
    AS, WS_, LB = 59, 62, 61
    vAo, vWo, vAa, vWa, vG = 1, 2, 3, 4, 5
    FA = [8, 16]
    FW = [12, 20]
    ACCB, ACCA = 32, 48
    NS = 5
    a.c("---- G3: final tile ----")
    a(f"s_and_b32 s63, s{task}, 7")
    a(f"s_lshr_b32 s64, s{task}, 3")
    a(f"s_lshl_b32 s{RT}, s63, 2")
    a(f"s_and_b32 s60, s64, 3")
    a(f"s_add_u32 s{RT}, s{RT}, s60")
    a(f"s_lshr_b32 s{CT}, s64, 2")
    a(f"s_bfe_u32 s{TR}, s{S_W}, 0x10001")
    a(f"s_and_b32 s{TC}, s{S_W}, 1")
    a(f"s_lshr_b32 s{KHh}, s{S_W}, 2")
    a(f"v_lshlrev_b32 v{vAo}, 4, v0")
    a("v_bfe_u32 v8, v0, 2, 1")
    a("v_bfe_u32 v9, v0, 4, 1")
    a("v_xor_b32 v8, v8, v9")
    a("v_lshlrev_b32 v8, 6, v8")
    a("v_and_b32 v9, 3, v0")
    a("v_lshlrev_b32 v9, 4, v9")
    a("v_lshrrev_b32 v10, 3, v0")
    a("v_lshlrev_b32 v10, 10, v10")
    a(f"v_add3_u32 v{vWo}, v8, v9, v10")
    a(f"s_lshl_b32 s60, s{TR}, 12")
    a(f"s_lshl_b32 s63, s{KHh}, 11")
    a(f"s_add_u32 s60, s60, s63")
    a(f"v_add_u32 v{vAa}, s60, v{vAo}")
    a("v_lshrrev_b32 v8, 5, v0")
    a("v_lshlrev_b32 v8, 2, v8")
    a("v_bfe_u32 v9, v0, 2, 2")
    a("v_add_u32 v8, v8, v9")
    a("v_lshlrev_b32 v8, 7, v8")
    a("v_bfe_u32 v9, v0, 3, 1")
    a(f"v_xor_b32 v9, s{TC}, v9")
    a("v_lshlrev_b32 v9, 6, v9")
    a("v_add_u32 v8, v8, v9")
    a("v_bfe_u32 v9, v0, 4, 1")
    a("v_lshlrev_b32 v9, 5, v9")
    a("v_and_b32 v10, 3, v0")
    a("v_lshlrev_b32 v10, 3, v10")
    a("v_add3_u32 v8, v8, v9, v10")
    a(f"s_lshl_b32 s60, s{KHh}, 12")
    a(f"s_add_u32 s60, s60, 8192")
    a(f"v_add_u32 v{vWa}, s60, v8")
    AH, AO = 65, 66
    a(f"s_lshl_b32 s60, s{RT}, 1")
    a(f"s_add_u32 s60, s60, s{KHh}")
    a(f"s_and_b32 s63, s{S_W}, 3")
    a(f"s_mul_i32 s{AH}, s60, {HSTEPS}")
    a(f"s_add_u32 s{AH}, s{AH}, s63")
    a(f"s_lshl_b32 s{AH}, s{AH}, 10")
    a(f"s_add_u32 s{AH}, s{AH}, 0x{HF:x}")
    a(f"s_lshl_b32 s{AO}, s60, 5")
    a(f"s_add_u32 s{AO}, s{AO}, s63")
    a(f"s_lshl_b32 s{AO}, s{AO}, 10")
    a(f"s_add_u32 s{AO}, s{AO}, 0x{OF:x}")
    a(f"s_lshl_b32 s{WS_}, s{S_W}, 13")
    a(f"s_lshl_b32 s60, s{CT}, 7")
    a(f"s_add_u32 s{WS_}, s{WS_}, s60")
    a(f"s_lshl_b32 s{LB}, s{S_W}, 10")
    a(f"s_lshl_b32 s60, s{RT}, 6")
    a(f"s_lshl_b32 s63, s{TR}, 5")
    a(f"s_add_u32 s60, s60, s63")
    a(f"s_lshl_b32 s60, s60, 2")
    a(f"s_add_u32 s67, s60, 0x{GV:x}")
    a("v_and_b32 v8, 31, v0")
    a("v_lshlrev_b32 v8, 2, v8")
    a("s_waitcnt lgkmcnt(0)")
    mk_srd(a, SRD0, P_WD, 1376 * 1024)
    mk_srd(a, SRD1, P_WO, 512 * 1024)
    mk_srd(a, SRD2, P_WS, WS_BYTES)
    mk_srd(a, SRD3, P_OUT, 2048 * 1024)
    vm = VmTracker()
    a(f"buffer_load_dword v{vG}, v8, s[{SRD2}:{SRD2+3}], s67 offen")
    vm.issue("G")
    stages = [("H", i) for i in range(22)] + [("O", i) for i in range(8)]

    def sdma(n):
        kind, i = stages[n]
        slot = n % NS
        if kind == "H":
            dma(a, vAo, SRD2, AH, i * 4096, LB, slot * 16384)
            dma(a, vWo, SRD0, WS_, i * 64 * 1024, LB, slot * 16384 + 8192)
        else:
            dma(a, vAo, SRD2, AO, i * 4096, LB, slot * 16384)
            dma(a, vWo, SRD1, WS_, i * 64 * 1024, LB, slot * 16384 + 8192)
        vm.issue(f"S{n}", 2)

    vAa2, vWa2 = 6, 7
    a(f"v_add_u32 v{vAa2}, 0x10000, v{vAa}")
    a(f"v_add_u32 v{vWa2}, 0x10000, v{vWa}")

    def reads(n, s, buf):
        slot = n % NS
        ra, rw, so = (vAa, vWa, slot * 16384) if slot < 4 else (vAa2, vWa2, 0)
        a(f"ds_read_b128 {vr(FA[buf],4)}, v{ra} offset:{so + s*1024}")
        a(f"ds_read_b64_tr_b16 {vr(FW[buf],2)}, v{rw} offset:{so + s*2048}")
        a(f"ds_read_b64_tr_b16 {vr(FW[buf]+2,2)}, v{rw} offset:{so + s*2048 + 1024}")

    stamp(a, 1)
    for n in range(NS):
        sdma(n)
    for i in range(32):
        a(f"v_mov_b32 v{ACCB+i}, 0")
    a(f"s_waitcnt vmcnt({vm.wait_for(['S0'])})")
    a("s_barrier")
    stamp(a, 2)
    reads(0, 0, 0)
    buf = 0
    N = len(stages)
    for n in range(N):
        acc = ACCB if stages[n][0] == "H" else ACCA
        for s in range(2):
            if s == 0:
                reads(n, 1, buf ^ 1)
                a("s_waitcnt lgkmcnt(3)")
            else:
                a("s_waitcnt lgkmcnt(0)")
                if n < N - 1:
                    a(f"s_waitcnt vmcnt({vm.wait_for([f'S{n+1}'])})")
                    a("s_barrier")
                    if n + NS < N:
                        sdma(n + NS)
                    reads(n + 1, 0, buf ^ 1)
            a(f"v_mfma_f32_32x32x16_bf16 {vr(acc,16)}, {vr(FW[buf],4)}, {vr(FA[buf],4)}, {vr(acc,16)}")
            buf ^= 1
    stamp(a, 3)
    a("s_nop 7")
    a("s_nop 7")
    a(f"v_sub_f32 v6, 1.0, v{vG}")
    for i in range(16):
        a(f"v_mul_f32 v{ACCB+i}, v6, v{ACCB+i}")
    for i in range(16):
        a(f"v_fmac_f32 v{ACCB+i}, v{vG}, v{ACCA+i}")
    a("s_barrier")
    a("v_and_b32 v8, 31, v0")
    a(f"s_lshl_b32 s60, s{TR}, 5")
    a("v_add_u32 v8, s60, v8")
    a("v_mul_u32_u24 v8, 272, v8")
    a("v_lshrrev_b32 v9, 5, v0")
    a("v_lshlrev_b32 v9, 4, v9")
    a(f"s_mul_i32 s60, s{KHh}, {64*272}")
    a(f"s_lshl_b32 s63, s{TC}, 7")
    a("s_add_u32 s60, s60, s63")
    a("v_add3_u32 v8, v8, v9, s60")
    for q in range(4):
        a(f"ds_write_b128 v8, {vr(ACCB+4*q,4)} offset:{q*32}")
    a("s_waitcnt lgkmcnt(0)")
    a("s_barrier")
    a(f"s_lshl_b32 s60, s{S_W}, 3")
    a("v_lshrrev_b32 v8, 3, v0")
    a("v_add_u32 v8, s60, v8")
    a("v_and_b32 v9, 7, v0")
    a("v_mul_u32_u24 v10, 272, v8")
    a("v_lshlrev_b32 v11, 5, v9")
    a("v_add_u32 v10, v10, v11")
    a("ds_read_b128 v[12:15], v10")
    a("ds_read_b128 v[16:19], v10 offset:16")
    a(f"ds_read_b128 v[20:23], v10 offset:{64*272}")
    a(f"ds_read_b128 v[24:27], v10 offset:{64*272+16}")
    a("v_lshlrev_b32 v8, 10, v8")
    a("v_lshlrev_b32 v9, 4, v9")
    a("v_add_u32 v8, v8, v9")
    a(f"s_lshl_b32 s60, s{RT}, 16")
    a(f"s_lshl_b32 s63, s{CT}, 7")
    a("s_add_u32 s60, s60, s63")
    a("s_waitcnt lgkmcnt(0)")
    for i in range(8):
        a(f"v_add_f32 v{12+i}, v{12+i}, v{20+i}")
    for i in range(4):
        a(f"v_cvt_pk_bf16_f32 v{28+i}, v{12+2*i}, v{13+2*i}")
    a(f"buffer_store_dwordx4 v[28:31], v8, s[{SRD3}:{SRD3+3}], s60 offen")
    a(f"s_branch {end_label}")
```

```python
import sys
from asmlib import *
import roles
from roles import (QF, KF, VF, OF, GV, HF, HSTEPS, WS_BYTES, QSCALE, S_W, P_AX, P_WQKV, P_WO, P_WG, P_WU, P_WD, P_GW,
                   P_OUT, P_DBG, P_WS, SRD0, SRD1, SRD2, SRD3, F_QKV, F_H, F_O, F_G, EPOCH, S_NONCE,
                   mk_srd, dma, x_dma_voffset, w256_dma_voffset, x_frag_addrs, w256_frag_addr,
                   nonce_issue, publish, wait_flags, stamp, stamp_flush)

NAME = "gated_mix__mha_block__swiglu_ffn__prompt"
ST = "sc0 sc1"
LD = "sc1"

OPT = dict(prefetch=True)


def gemm_xw_mainloop(a, cfg):
    pass


def role_g1(a, pfx):
    RT, CT, WR, WC = 38, 39, 56, 57
    XS, WS_, LB = 58, 59, 61
    vXo, vWo, vXa, vWa = 1, 2, 3, 7
    FX = [8, 20]
    FW = [16, 28]
    ACC = 32
    XREG, WREG = 0, 49152
    task = 4
    a.c("---- G1: QKV tile ----")
    a(f"s_and_b32 s62, s{task}, 7")
    a(f"s_lshr_b32 s63, s{task}, 3")
    a(f"s_lshr_b32 s{RT}, s62, 1")
    a(f"s_lshl_b32 s{RT}, s{RT}, 2")
    a(f"s_and_b32 s60, s63, 3")
    a(f"s_add_u32 s{RT}, s{RT}, s60")
    a(f"s_and_b32 s{CT}, s62, 1")
    a(f"s_mul_i32 s{CT}, s{CT}, 6")
    a(f"s_lshr_b32 s60, s63, 2")
    a(f"s_add_u32 s{CT}, s{CT}, s60")
    a(f"s_lshr_b32 s{WR}, s{S_W}, 2")
    a(f"s_and_b32 s{WC}, s{S_W}, 3")
    x_dma_voffset(a, vXo, 8, 9)
    w256_dma_voffset(a, vWo, 3072, 8, 9)
    a(f"s_lshl_b32 s{XS}, s{RT}, 7")
    a(f"s_lshl_b32 s60, s{S_W}, 3")
    a(f"s_add_u32 s{XS}, s{XS}, s60")
    a(f"s_lshl_b32 s{XS}, s{XS}, 10")
    a(f"s_mul_i32 s{WS_}, s{S_W}, {4*3072}")
    a(f"s_lshl_b32 s60, s{CT}, 8")
    a(f"s_add_u32 s{WS_}, s{WS_}, s60")
    a(f"s_lshl_b32 s{LB}, s{S_W}, 10")
    a("s_waitcnt lgkmcnt(0)")
    mk_srd(a, SRD0, P_AX, 2048 * 1024)
    mk_srd(a, SRD1, P_WQKV, 512 * 3072)

    def xdma(j):
        slot = j % 3
        dma(a, vXo, SRD0, XS, j * 128, LB, XREG + slot * 16384)
        dma(a, vXo, SRD0, XS, j * 128 + 65536, LB, XREG + slot * 16384 + 8192)

    def wdma(j):
        slot = j % 2
        dma(a, vWo, SRD1, WS_, j * 64 * 3072, LB, WREG + slot * 16384)
        dma(a, vWo, SRD1, WS_, j * 64 * 3072 + 32 * 3072, LB, WREG + slot * 16384 + 8192)

    def reads(j, s, buf):
        xs, wsl = (j % 3) * 16384, (j % 2) * 16384
        for tt in range(2):
            a(f"ds_read_b128 {vr(FX[buf]+4*tt,4)}, v{vXa+s} offset:{xs + tt*4096}")
        a(f"ds_read_b64_tr_b16 {vr(FW[buf],2)}, v{vWa} offset:{wsl + s*4096}")
        a(f"ds_read_b64_tr_b16 {vr(FW[buf]+2,2)}, v{vWa} offset:{wsl + s*4096 + 1024}")

    stamp(a, 1)
    vm0 = VmTracker()
    xdma(0); vm0.issue("X0", 2)
    wdma(0); vm0.issue("W0", 2)
    xdma(1); vm0.issue("X1", 2)
    wdma(1); vm0.issue("W1", 2)
    xdma(2); vm0.issue("X2", 2)
    nonce_issue(a)
    mk_srd(a, SRD2, P_WS, WS_BYTES)
    x_frag_addrs(a, vXa, WR, 8, 9)
    w256_frag_addr(a, vWa, WC, WREG, 8, 9, 10)
    for i in range(32):
        a(f"v_mov_b32 v{ACC+i}, 0")

    def mainloop(vtype):
        vm = VmTracker(); vm.ops = list(vm0.ops)
        a(f"s_waitcnt vmcnt({vm.wait_for(['X0','W0'])})")
        a("s_barrier")
        stamp(a, 2)
        reads(0, 0, 0)
        buf = 0
        for j in range(8):
            for s in range(4):
                if s < 3:
                    reads(j, s + 1, buf ^ 1)
                    a("s_waitcnt lgkmcnt(4)")
                else:
                    a("s_waitcnt lgkmcnt(0)")
                    if j < 7:
                        a(f"s_waitcnt vmcnt({vm.wait_for([f'X{j+1}', f'W{j+1}'])})")
                        a("s_barrier")
                        if j + 2 < 8:
                            wdma(j + 2); vm.issue(f"W{j+2}", 2)
                        if j + 3 < 8:
                            xdma(j + 3); vm.issue(f"X{j+3}", 2)
                        reads(j + 1, 0, buf ^ 1)
                for tt in range(2):
                    acc = vr(ACC + 16 * tt, 16)
                    if vtype:
                        a(f"v_mfma_f32_32x32x16_bf16 {acc}, {vr(FX[buf]+4*tt,4)}, {vr(FW[buf],4)}, {acc}")
                    else:
                        a(f"v_mfma_f32_32x32x16_bf16 {acc}, {vr(FW[buf],4)}, {vr(FX[buf]+4*tt,4)}, {acc}")
                buf ^= 1
        stamp(a, 3)

    def tile_base():
        a(f"s_and_b32 s60, s{CT}, 3")
        a(f"s_lshl_b32 s60, s60, 3")
        a(f"s_lshl_b32 s62, s{WC}, 1")
        a(f"s_add_u32 s60, s60, s62")
        a(f"s_lshl_b32 s60, s60, 16")
        a(f"s_lshl_b32 s62, s{RT}, 2")
        a(f"s_lshl_b32 s63, s{WR}, 1")
        a(f"s_add_u32 s62, s62, s63")
        a(f"s_lshl_b32 s62, s62, 10")
        a(f"s_add_u32 s60, s60, s62")

    Lv, Ld = f"{pfx}_v", f"{pfx}_pub"
    a(f"s_cmp_ge_u32 s{CT}, 8")
    a(f"s_cbranch_scc1 {Lv}")
    mainloop(False)
    tile_base()
    a(f"v_lshlrev_b32 v1, 4, v0")
    a(f"s_cmp_lt_u32 s{CT}, 4")
    a(f"s_cselect_b32 s62, 0x{QSCALE:x}, 1.0")
    a(f"s_cbranch_scc1 {pfx}_isq")
    a(f"s_add_u32 s60, s60, 0x{KF:x}")
    a("v_and_b32 v2, 0x33, v0")
    a("v_bfe_u32 v3, v0, 2, 1")
    a("v_lshlrev_b32 v3, 3, v3")
    a("v_bfe_u32 v4, v0, 3, 1")
    a("v_lshlrev_b32 v4, 2, v4")
    a("v_or3_b32 v2, v2, v3, v4")
    a("v_lshlrev_b32 v1, 4, v2")
    a.label(f"{pfx}_isq")
    a("s_nop 7")
    a("s_nop 3")
    for tt in range(2):
        for hh in range(2):
            for i in range(8):
                r = ACC + 16 * tt + 8 * hh + i
                a(f"v_mul_f32 v{r}, s62, v{r}")
            d = 8 + 4 * (2 * tt + hh)
            for i in range(4):
                r = ACC + 16 * tt + 8 * hh + 2 * i
                a(f"v_cvt_pk_bf16_f32 v{d+i}, v{r}, v{r+1}")
            a(f"s_add_u32 s63, s60, {hh*65536 + tt*1024}")
            a(f"buffer_store_dwordx4 {vr(d,4)}, v1, s[{SRD2}:{SRD2+3}], s63 offen {ST}")
    a(f"s_branch {Ld}")
    a.label(Lv)
    mainloop(True)
    tile_base()
    a(f"s_add_u32 s60, s60, 0x{VF:x}")
    a("v_bfe_u32 v2, v0, 4, 1")
    a("v_lshlrev_b32 v2, 16, v2")
    a("v_lshrrev_b32 v3, 5, v0")
    a("v_lshlrev_b32 v3, 8, v3")
    a("v_and_b32 v4, 15, v0")
    a("v_lshlrev_b32 v4, 4, v4")
    a("v_add3_u32 v1, v2, v3, v4")
    a("s_nop 7")
    a("s_nop 3")
    for tt in range(2):
        for jj in range(2):
            d = 8 + 4 * (2 * tt + jj)
            for i in range(4):
                r = ACC + 16 * tt + 8 * jj + 2 * i
                a(f"v_cvt_pk_bf16_f32 v{d+i}, v{r}, v{r+1}")
            a(f"s_add_u32 s63, s60, {tt*1024 + jj*512}")
            a(f"buffer_store_dwordx4 {vr(d,4)}, v1, s[{SRD2}:{SRD2+3}], s63 offen {ST}")
    a.label(Ld)
    a(f"s_lshl_b32 s64, s{CT}, 4")
    a(f"s_add_u32 s64, s64, s{RT}")
    publish(a, 64, F_QKV, SRD2)
    stamp(a, 4)


def role_gate(a, pfx):
    task = 4
    a.c("---- gate ----")
    mk_srd(a, SRD0, P_AX, 2048 * 1024)
    mk_srd(a, SRD1, P_GW, 1024)
    mk_srd(a, SRD2, P_WS, WS_BYTES)
    a(f"s_lshl_b32 s60, s{task}, 5")
    a(f"s_lshl_b32 s61, s{S_W}, 2")
    a(f"s_add_u32 s65, s60, s61")
    a(f"s_lshl_b32 s61, s65, 10")
    a("v_lshlrev_b32 v1, 4, v0")
    a(f"buffer_load_dwordx4 v[4:7], v1, s[{SRD1}:{SRD1+3}], 0 offen")
    for r in range(4):
        a(f"s_add_u32 s62, s61, {r*1024}")
        a(f"buffer_load_dwordx4 v[{8+4*r}:{11+4*r}], v1, s[{SRD0}:{SRD0+3}], s62 offen")
    a("s_waitcnt vmcnt(0)")
    for r in range(4):
        a(f"v_mov_b32 v{28+r}, 0")
    for i in range(4):
        for r in range(4):
            a(f"v_dot2_f32_bf16 v{28+r}, v{8+4*r+i}, v{4+i}, v{28+r}")
    a("s_nop 2")
    for sh in ("row_shr:1", "row_shr:2", "row_shr:4", "row_shr:8"):
        for r in range(4):
            a(f"v_add_f32_dpp v{28+r}, v{28+r}, v{28+r} {sh} row_mask:0xf bank_mask:0xf bound_ctrl:0")
        a("s_nop 1")
    for r in range(4):
        a(f"v_add_f32_dpp v{28+r}, v{28+r}, v{28+r} row_bcast:15 row_mask:0xa bank_mask:0xf")
    a("s_nop 1")
    for r in range(4):
        a(f"v_add_f32_dpp v{28+r}, v{28+r}, v{28+r} row_bcast:31 row_mask:0xc bank_mask:0xf")
    a("s_nop 1")
    for r in range(4):
        a(f"v_mul_f32 v{28+r}, 0xbfb8aa3b, v{28+r}")
    for r in range(4):
        a(f"v_exp_f32 v{28+r}, v{28+r}")
    a("s_nop 0")
    for r in range(4):
        a(f"v_add_f32 v{28+r}, 1.0, v{28+r}")
    for r in range(4):
        a(f"v_rcp_f32 v{28+r}, v{28+r}")
    a("s_nop 0")
    a("s_mov_b32 s62, 0")
    a("s_mov_b32 s63, 0x80000000")
    a("s_mov_b64 exec, s[62:63]")
    a(f"s_lshl_b32 s61, s65, 2")
    a(f"s_add_u32 s61, s61, 0x{GV:x}")
    a("v_mov_b32 v1, 0")
    a(f"buffer_store_dwordx4 v[28:31], v1, s[{SRD2}:{SRD2+3}], s61 offen {ST}")
    a("s_mov_b64 exec, -1")
    publish(a, task, F_G, SRD2)


def role_g2(a, pfx):
    RT, CT, WR, WC = 38, 39, 56, 57
    XS, WS_, LB = 58, 59, 61
    vXo, vWo, vXa, vWa = 1, 2, 3, 7
    FX = [8, 24]
    FG = [16, 32]
    FU = [20, 36]
    AG, AU = 40, 72
    XREG, WREG = 0, 32768
    a.c("---- G2: gate/up tile ----")
    a(f"s_and_b32 s62, s2, 7")
    a(f"s_and_b32 s60, s62, 1")
    a(f"s_mul_i32 s60, s60, 22")
    a(f"s_add_u32 s63, s4, s60")
    a(f"s_lshr_b32 s{CT}, s63, 2")
    a(f"s_lshr_b32 s{RT}, s62, 1")
    a(f"s_lshl_b32 s{RT}, s{RT}, 2")
    a(f"s_and_b32 s60, s63, 3")
    a(f"s_add_u32 s{RT}, s{RT}, s60")
    a(f"s_lshr_b32 s{WR}, s{S_W}, 2")
    a(f"s_and_b32 s{WC}, s{S_W}, 3")
    x_dma_voffset(a, vXo, 8, 9)
    w256_dma_voffset(a, vWo, 2752, 8, 9)
    a(f"s_lshl_b32 s{XS}, s{RT}, 7")
    a(f"s_lshl_b32 s60, s{S_W}, 3")
    a(f"s_add_u32 s{XS}, s{XS}, s60")
    a(f"s_lshl_b32 s{XS}, s{XS}, 10")
    a(f"s_mul_i32 s{WS_}, s{S_W}, {4*2752}")
    a(f"s_lshl_b32 s60, s{CT}, 8")
    a(f"s_add_u32 s{WS_}, s{WS_}, s60")
    a(f"s_lshl_b32 s{LB}, s{S_W}, 10")
    a("s_waitcnt lgkmcnt(0)")
    a("s_cmp_lt_u32 s2, 192")
    a(f"s_cbranch_scc1 {pfx}_hasnonce")
    nonce_issue(a)
    a.label(f"{pfx}_hasnonce")
    mk_srd(a, SRD0, P_AX, 2048 * 1024)
    mk_srd(a, SRD1, P_WG, 512 * 2752)
    mk_srd(a, SRD3, P_WU, 512 * 2752)
    mk_srd(a, SRD2, P_WS, WS_BYTES)

    def xdma(j):
        slot = j % 2
        dma(a, vXo, SRD0, XS, j * 128, LB, XREG + slot * 16384)
        dma(a, vXo, SRD0, XS, j * 128 + 65536, LB, XREG + slot * 16384 + 8192)

    def wdma(u):
        slot = u % 3
        dma(a, vWo, SRD1, WS_, u * 32 * 2752, LB, WREG + slot * 16384)
        dma(a, vWo, SRD3, WS_, u * 32 * 2752, LB, WREG + slot * 16384 + 8192)

    def reads(u, s, buf):
        xs, wsl = ((u >> 1) % 2) * 16384, (u % 3) * 16384
        sx = 2 * (u & 1) + s
        for tt in range(2):
            a(f"ds_read_b128 {vr(FX[buf]+4*tt,4)}, v{vXa+sx} offset:{xs + tt*4096}")
        for F, mo in ((FG, 0), (FU, 8192)):
            a(f"ds_read_b64_tr_b16 {vr(F[buf],2)}, v{vWa} offset:{wsl + mo + s*4096}")
            a(f"ds_read_b64_tr_b16 {vr(F[buf]+2,2)}, v{vWa} offset:{wsl + mo + s*4096 + 1024}")

    vm = VmTracker()
    xdma(0); vm.issue("X0", 2)
    wdma(0); vm.issue("W0", 2)
    wdma(1); vm.issue("W1", 2)
    xdma(1); vm.issue("X1", 2)
    wdma(2); vm.issue("W2", 2)
    x_frag_addrs(a, vXa, WR, 8, 9)
    w256_frag_addr(a, vWa, WC, WREG, 8, 9, 10)
    for i in range(64):
        a(f"v_mov_b32 v{AG+i}, 0")
    a(f"s_waitcnt vmcnt({vm.wait_for(['X0','W0'])})")
    a("s_barrier")
    reads(0, 0, 0)
    buf = 0
    for u in range(16):
        for s in range(2):
            if s == 0:
                reads(u, 1, buf ^ 1)
                a("s_waitcnt lgkmcnt(6)")
            else:
                a("s_waitcnt lgkmcnt(0)")
                if u < 15:
                    a(f"s_waitcnt vmcnt({vm.wait_for([f'W{u+1}', f'X{(u+1)>>1}'])})")
                    a("s_barrier")
                    if u + 3 < 16:
                        wdma(u + 3); vm.issue(f"W{u+3}", 2)
                    if (u & 1) and (u >> 1) + 2 < 8:
                        xdma((u >> 1) + 2); vm.issue(f"X{(u>>1)+2}", 2)
                    reads(u + 1, 0, buf ^ 1)
            for tt in range(2):
                ag, au = vr(AG + 16 * tt, 16), vr(AU + 16 * tt, 16)
                a(f"v_mfma_f32_32x32x16_bf16 {ag}, {vr(FG[buf],4)}, {vr(FX[buf]+4*tt,4)}, {ag}")
                a(f"v_mfma_f32_32x32x16_bf16 {au}, {vr(FU[buf],4)}, {vr(FX[buf]+4*tt,4)}, {au}")
            buf ^= 1
    a(f"s_lshl_b32 s62, s{RT}, 2")
    a(f"s_lshl_b32 s63, s{WR}, 1")
    a(f"s_add_u32 s62, s62, s63")
    a(f"s_mul_i32 s62, s62, {HSTEPS}")
    a(f"s_lshl_b32 s60, s{CT}, 3")
    a(f"s_lshl_b32 s63, s{WC}, 1")
    a(f"s_add_u32 s60, s60, s63")
    a(f"s_cmp_ge_u32 s60, 86")
    a(f"s_cselect_b32 s64, 0, 1.0")
    a(f"s_add_u32 s60, s60, s62")
    a(f"s_lshl_b32 s60, s60, 10")
    a(f"s_add_u32 s65, s60, 0x{HF:x}")
    a("v_lshlrev_b32 v1, 4, v0")
    a("s_nop 7")
    T = 8
    for tt in range(2):
        for hh in range(2):
            g0, u0 = AG + 16 * tt + 8 * hh, AU + 16 * tt + 8 * hh
            for i in range(8):
                a(f"v_mul_f32 v{T+i}, 0xbfb8aa3b, v{g0+i}")
            for i in range(8):
                a(f"v_exp_f32 v{T+i}, v{T+i}")
            for i in range(8):
                a(f"v_mul_f32 v{u0+i}, v{g0+i}, v{u0+i}")
            for i in range(8):
                a(f"v_add_f32 v{T+i}, 1.0, v{T+i}")
            for i in range(8):
                a(f"v_rcp_f32 v{T+i}, v{T+i}")
            for i in range(8):
                a(f"v_mul_f32 v{u0+i}, s64, v{u0+i}")
            for i in range(8):
                a(f"v_mul_f32 v{u0+i}, v{u0+i}, v{T+i}")
            d = 16 + 4 * (2 * tt + hh)
            for i in range(4):
                a(f"v_cvt_pk_bf16_f32 v{d+i}, v{u0+2*i}, v{u0+2*i+1}")
            a(f"s_add_u32 s63, s65, {tt*HSTEPS*1024 + hh*1024}")
            a(f"buffer_store_dwordx4 {vr(d,4)}, v1, s[{SRD2}:{SRD2+3}], s63 offen {ST}")
    a(f"s_lshl_b32 s64, s{RT}, 4")
    a(f"s_add_u32 s64, s64, s{CT}")
    publish(a, 64, F_H, SRD2)


def role_g3(a, pfx):
    RT, CT, TR, TC, KHh = 38, 39, 56, 57, 58
    WS_, LB = 59, 61
    AH = 65
    vAo, vWo, vAa, vWa, vAa2, vWa2 = 1, 2, 3, 4, 6, 7
    FA = [8, 16]
    FW = [12, 20]
    ACCB = 32
    NS = 5
    task = 4
    a.c("---- G3: down projection ----")
    a(f"s_and_b32 s63, s{task}, 7")
    a(f"s_lshr_b32 s64, s{task}, 3")
    a(f"s_lshl_b32 s{RT}, s63, 2")
    a(f"s_and_b32 s60, s64, 3")
    a(f"s_add_u32 s{RT}, s{RT}, s60")
    a(f"s_lshr_b32 s{CT}, s64, 2")
    a(f"s_bfe_u32 s{TR}, s{S_W}, 0x10001")
    a(f"s_and_b32 s{TC}, s{S_W}, 1")
    a(f"s_lshr_b32 s{KHh}, s{S_W}, 2")
    a(f"v_lshlrev_b32 v{vAo}, 4, v0")
    a("v_bfe_u32 v8, v0, 2, 1")
    a("v_bfe_u32 v9, v0, 4, 1")
    a("v_xor_b32 v8, v8, v9")
    a("v_lshlrev_b32 v8, 6, v8")
    a("v_and_b32 v9, 3, v0")
    a("v_lshlrev_b32 v9, 4, v9")
    a("v_lshrrev_b32 v10, 3, v0")
    a("v_lshlrev_b32 v10, 10, v10")
    a(f"v_add3_u32 v{vWo}, v8, v9, v10")
    a(f"s_lshl_b32 s60, s{TR}, 12")
    a(f"s_lshl_b32 s63, s{KHh}, 11")
    a(f"s_add_u32 s60, s60, s63")
    a(f"v_add_u32 v{vAa}, s60, v{vAo}")
    a("v_lshrrev_b32 v8, 5, v0")
    a("v_lshlrev_b32 v8, 2, v8")
    a("v_bfe_u32 v9, v0, 2, 2")
    a("v_add_u32 v8, v8, v9")
    a("v_lshlrev_b32 v8, 7, v8")
    a("v_bfe_u32 v9, v0, 4, 1")
    a("v_lshlrev_b32 v9, 5, v9")
    a("v_and_b32 v10, 3, v0")
    a("v_lshlrev_b32 v10, 3, v10")
    a("v_add3_u32 v8, v8, v9, v10")
    a("v_bfe_u32 v9, v0, 3, 1")
    a("v_lshlrev_b32 v9, 6, v9")
    a("v_add_u32 v5, v8, v9")
    a(f"s_lshl_b32 s60, s{TC}, 6")
    a(f"v_xor_b32 v8, s60, v5")
    a(f"s_lshl_b32 s60, s{KHh}, 12")
    a(f"s_add_u32 s60, s60, 8192")
    a(f"v_add_u32 v{vWa}, s60, v8")
    a(f"v_add_u32 v{vAa2}, 0x10000, v{vAa}")
    a(f"v_add_u32 v{vWa2}, 0x10000, v{vWa}")
    a(f"s_lshl_b32 s60, s{RT}, 1")
    a(f"s_add_u32 s60, s60, s{KHh}")
    a(f"s_and_b32 s63, s{S_W}, 3")
    a(f"s_mul_i32 s{AH}, s60, {HSTEPS}")
    a(f"s_add_u32 s{AH}, s{AH}, s63")
    a(f"s_lshl_b32 s{AH}, s{AH}, 10")
    a(f"s_add_u32 s{AH}, s{AH}, 0x{HF:x}")
    a(f"s_lshl_b32 s{WS_}, s{S_W}, 13")
    a(f"s_lshl_b32 s60, s{CT}, 7")
    a(f"s_add_u32 s{WS_}, s{WS_}, s60")
    a(f"s_lshl_b32 s{LB}, s{S_W}, 10")
    mk_srd(a, SRD0, P_WD, 1376 * 1024)
    mk_srd(a, SRD1, P_WO, 512 * 1024)
    mk_srd(a, SRD2, P_WS, WS_BYTES)
    mk_srd(a, SRD3, P_OUT, 2048 * 1024)
    a(f"s_lshr_b32 s60, s{RT}, 1")
    a(f"s_lshl_b32 s60, s60, 11")
    a(f"s_add_u32 s60, s60, 0x{F_H:x}")
    a("v_lshlrev_b32 v10, 7, v0")
    a("v_add_u32 v10, s60, v10")
    wait_flags(a, 10, 11, SRD2)
    stamp(a, 5)
    vm = VmTracker()
    N = 22

    def sdma(n):
        slot = n % NS
        dma(a, vAo, SRD2, AH, n * 4096, LB, slot * 16384, mods=LD)
        dma(a, vWo, SRD0, WS_, n * 64 * 1024, LB, slot * 16384 + 8192)
        vm.issue(f"S{n}", 2)

    def reads(n, s, buf):
        slot = n % NS
        ra, rw, so = (vAa, vWa, slot * 16384) if slot < 4 else (vAa2, vWa2, 0)
        a(f"ds_read_b128 {vr(FA[buf],4)}, v{ra} offset:{so + s*1024}")
        a(f"ds_read_b64_tr_b16 {vr(FW[buf],2)}, v{rw} offset:{so + s*2048}")
        a(f"ds_read_b64_tr_b16 {vr(FW[buf]+2,2)}, v{rw} offset:{so + s*2048 + 1024}")

    for n in range(NS):
        sdma(n)
    for i in range(16):
        a(f"v_mov_b32 v{ACCB+i}, 0")
    a(f"s_waitcnt vmcnt({vm.wait_for(['S0'])})")
    a("s_barrier")
    reads(0, 0, 0)
    buf = 0
    for n in range(N):
        for s in range(2):
            if s == 0:
                reads(n, 1, buf ^ 1)
                a("s_waitcnt lgkmcnt(3)")
            else:
                a("s_waitcnt lgkmcnt(0)")
                if n < N - 1:
                    a(f"s_waitcnt vmcnt({vm.wait_for([f'S{n+1}'])})")
                    a("s_barrier")
                    if n + NS < N:
                        sdma(n + NS)
                    reads(n + 1, 0, buf ^ 1)
            a(f"v_mfma_f32_32x32x16_bf16 {vr(ACCB,16)}, {vr(FW[buf],4)}, {vr(FA[buf],4)}, {vr(ACCB,16)}")
            buf ^= 1
    a("v_and_b32 v8, 31, v0")
    a(f"s_lshl_b32 s60, s{TR}, 5")
    a("v_add_u32 v8, s60, v8")
    a("v_mul_u32_u24 v8, 272, v8")
    a("v_lshrrev_b32 v9, 5, v0")
    a("v_lshlrev_b32 v9, 4, v9")
    a(f"s_mul_i32 s60, s{KHh}, {64*272}")
    a(f"s_lshl_b32 s63, s{TC}, 7")
    a("s_add_u32 s60, s60, s63")
    a("v_add3_u32 v8, v8, v9, s60")
    a("s_barrier")
    a("s_nop 4")
    for q in range(4):
        a(f"ds_write_b128 v8, {vr(ACCB+4*q,4)} offset:{q*32}")
    a(f"s_lshl_b32 s60, s{S_W}, 3")
    a("v_lshrrev_b32 v24, 3, v0")
    a("v_add_u32 v24, s60, v24")
    a("v_and_b32 v25, 7, v0")
    a("v_mul_u32_u24 v26, 272, v24")
    a("v_lshlrev_b32 v27, 5, v25")
    a("v_add_u32 v26, v26, v27")
    a("s_waitcnt lgkmcnt(0)")
    a("s_barrier")
    B = 100
    a(f"ds_read_b128 v[{B}:{B+3}], v26")
    a(f"ds_read_b128 v[{B+4}:{B+7}], v26 offset:16")
    a(f"ds_read_b128 v[12:15], v26 offset:{64*272}")
    a(f"ds_read_b128 v[16:19], v26 offset:{64*272+16}")
    a("s_waitcnt lgkmcnt(0)")
    for i in range(8):
        a(f"v_add_f32 v{B+i}, v{B+i}, v{12+i}")
    a("s_barrier")
    stamp(a, 6)
    for i in range(8):
        dma(a, vWo, SRD1, WS_, i * 64 * 1024, LB, i * 8192)
    a(f"s_lshr_b32 s60, s{RT}, 2")
    a(f"s_lshl_b32 s60, s60, 12")
    a(f"s_add_u32 s60, s60, 0x{F_O:x}")
    a("v_lshlrev_b32 v10, 7, v0")
    a("v_add_u32 v10, s60, v10")
    a(f"s_lshl_b32 s60, s{RT}, 8")
    a(f"s_add_u32 s60, s60, 0x{F_G - 32*128:x}")
    a("v_lshlrev_b32 v11, 7, v0")
    a("v_add_u32 v11, s60, v11")
    a("v_cmp_gt_u32 vcc, 32, v0")
    a("s_nop 1")
    a("v_cndmask_b32 v10, v11, v10, vcc")
    wait_flags(a, 10, 34, SRD2)
    stamp(a, 7)
    OFr, ACCA = 32, 64
    a(f"s_and_b32 s62, s{S_W}, 1")
    a(f"s_lshr_b32 s63, s{S_W}, 1")
    a(f"s_lshl_b32 s60, s{RT}, 1")
    a("s_add_u32 s60, s60, s62")
    a("s_lshl_b32 s60, s60, 5")
    a("s_lshl_b32 s64, s63, 3")
    a("s_add_u32 s60, s60, s64")
    a("s_lshl_b32 s60, s60, 10")
    a(f"s_add_u32 s60, s60, 0x{OF:x}")
    for i in range(8):
        a(f"s_add_u32 s64, s60, {i*1024}")
        a(f"buffer_load_dwordx4 {vr(OFr+4*i,4)}, v{vAo}, s[{SRD2}:{SRD2+3}], s64 offen {LD}")
    a(f"s_lshl_b32 s60, s{RT}, 8")
    a(f"s_add_u32 s60, s60, 0x{GV:x}")
    a("v_lshlrev_b32 v11, 2, v24")
    a(f"buffer_load_dword v28, v11, s[{SRD2}:{SRD2+3}], s60 offen {LD}")
    a("s_lshl_b32 s64, s63, 14")
    a("v_add_u32 v4, s64, v5")
    a("v_xor_b32 v6, 64, v4")
    for i in range(32):
        a(f"v_mov_b32 v{ACCA+i}, 0")
    a("s_waitcnt vmcnt(9)")
    a("s_barrier")
    WF = [8, 12, 16, 20]

    def wreads(i, buf):
        for tc, va in ((0, 4), (1, 6)):
            d = WF[2 * buf + tc]
            a(f"ds_read_b64_tr_b16 {vr(d,2)}, v{va} offset:{i*2048}")
            a(f"ds_read_b64_tr_b16 {vr(d+2,2)}, v{va} offset:{i*2048 + 1024}")
    wreads(0, 0)
    for i in range(8):
        if i < 7:
            wreads(i + 1, (i + 1) & 1)
            a(f"s_waitcnt vmcnt({8 - i}) lgkmcnt(4)")
        else:
            a(f"s_waitcnt vmcnt(1) lgkmcnt(0)")
        for tc in range(2):
            acc = vr(ACCA + 16 * tc, 16)
            a(f"v_mfma_f32_32x32x16_bf16 {acc}, {vr(WF[2*(i&1)+tc],4)}, {vr(OFr+4*i,4)}, {acc}")
    a("v_and_b32 v8, 31, v0")
    a("s_lshl_b32 s60, s62, 5")
    a("v_add_u32 v8, s60, v8")
    a("v_mul_u32_u24 v8, 272, v8")
    a("v_lshrrev_b32 v9, 5, v0")
    a("v_lshlrev_b32 v9, 4, v9")
    a(f"s_mul_i32 s60, s63, {64*272}")
    a("v_add3_u32 v8, v8, v9, s60")
    a("s_barrier")
    a("s_nop 4")
    for tc in range(2):
        for q in range(4):
            a(f"ds_write_b128 v8, {vr(ACCA+16*tc+4*q,4)} offset:{tc*128 + q*32}")
    a("v_lshlrev_b32 v9, 10, v24")
    a("v_lshlrev_b32 v10, 4, v25")
    a("v_add_u32 v9, v9, v10")
    a(f"s_lshl_b32 s60, s{RT}, 16")
    a(f"s_lshl_b32 s63, s{CT}, 7")
    a("s_add_u32 s60, s60, s63")
    a("s_waitcnt lgkmcnt(0)")
    a("s_barrier")
    for p in range(4):
        a(f"ds_read_b128 v[{32+8*p}:{35+8*p}], v26 offset:{p*64*272}")
        a(f"ds_read_b128 v[{36+8*p}:{39+8*p}], v26 offset:{p*64*272+16}")
    a("s_waitcnt vmcnt(0)")
    a("v_sub_f32 v29, 1.0, v28")
    for i in range(8):
        a(f"v_mul_f32 v{B+i}, v29, v{B+i}")
    a("s_waitcnt lgkmcnt(0)")
    for i in range(8):
        a(f"v_add_f32 v{32+i}, v{32+i}, v{40+i}")
        a(f"v_add_f32 v{48+i}, v{48+i}, v{56+i}")
    for i in range(8):
        a(f"v_add_f32 v{32+i}, v{32+i}, v{48+i}")
    for i in range(8):
        a(f"v_fmac_f32 v{B+i}, v28, v{32+i}")
    for i in range(4):
        a(f"v_cvt_pk_bf16_f32 v{12+i}, v{B+2*i}, v{B+2*i+1}")
    a(f"buffer_store_dwordx4 v[12:15], v9, s[{SRD3}:{SRD3+3}], s60 offen")


def role_attn(a, pfx, end_label):
    H, QB, QG, KH, STG = 38, 39, 56, 57, 58
    GS, LB = 59, 61
    MSK = 64
    vKa, vVa, vDo = 1, 2, 3
    SA, SB, OA, OB = 16, 32, 48, 64
    QA, QBf = 80, 84
    KB = [88, 92]
    VB = [96, 104]
    IDX = 112
    task = 4
    a.c("---- attention ----")
    a(f"s_and_b32 s62, s{task}, 7")
    a(f"s_lshr_b32 s63, s{task}, 3")
    a(f"s_lshl_b32 s{H}, s62, 2")
    a(f"s_lshr_b32 s60, s63, 3")
    a(f"s_add_u32 s{H}, s{H}, s60")
    a(f"s_and_b32 s{QB}, s63, 7")
    a(f"s_and_b32 s{QG}, s{S_W}, 3")
    a(f"s_lshr_b32 s{KH}, s{S_W}, 2")
    a(f"s_lshl_b32 s{GS}, s{H}, 16")
    a(f"s_lshl_b32 s60, s{KH}, 15")
    a(f"s_add_u32 s{GS}, s{GS}, s60")
    a(f"s_lshl_b32 s60, s{QG}, 10")
    a(f"s_add_u32 s{GS}, s{GS}, s60")
    a(f"s_lshl_b32 s{LB}, s{KH}, 13")
    a(f"s_add_u32 s{LB}, s{LB}, s60")
    a(f"v_lshlrev_b32 v{vDo}, 4, v0")
    a(f"s_lshl_b32 s60, s{KH}, 13")
    a(f"v_add_u32 v{vKa}, s60, v{vDo}")
    a(f"v_lshrrev_b32 v4, 5, v0")
    a(f"v_lshlrev_b32 v4, 8, v4")
    a(f"v_and_b32 v5, 15, v0")
    a(f"v_lshlrev_b32 v5, 4, v5")
    a(f"s_add_u32 s60, s60, 4096")
    a(f"v_add3_u32 v{vVa}, v4, v5, s60")
    a(f"s_mov_b32 s{MSK}, 0x0000ffff")
    a(f"s_mov_b32 s{MSK+1}, 0x0000ffff")
    mk_srd(a, SRD2, P_WS, WS_BYTES)
    for i in range(16):
        a(f"v_mov_b32 v{OA+i}, 0")
        a(f"v_mov_b32 v{OB+i}, 0")
        a(f"v_mov_b32 v{SB+i}, 0")
    a(f"v_mov_b32 v{IDX}, 0xdddddddd")
    a("v_and_b32 v4, 16, v0")
    a("v_cmp_ne_u32 vcc, 0, v4")
    a("v_mov_b32 v5, 0x3f803f80")
    a("s_nop 1")
    for i in range(16):
        a(f"v_cndmask_b32 v{VB[0]+i}, 0, v5, vcc")
    a(f"s_lshr_b32 s60, s{H}, 3")
    a("v_lshrrev_b32 v4, 4, v0")
    a("v_lshlrev_b32 v4, 2, v4")
    a("v_add_u32 v4, 4, v4")
    a("v_cmp_gt_u32 vcc, 32, v0")
    a("s_nop 1")
    a("v_cndmask_b32 v4, 0, v4, vcc")
    a("v_add_u32 v4, s60, v4")
    a("v_and_b32 v5, 15, v0")
    a(f"s_lshl_b32 s62, s{QB}, 1")
    a("v_add_u32 v6, s62, v5")
    a("v_cndmask_b32 v5, v6, v5, vcc")
    a("v_lshl_add_u32 v4, v4, 4, v5")
    a("v_lshlrev_b32 v4, 7, v4")
    a(f"v_add_u32 v4, 0x{F_QKV:x}, v4")
    stamp(a, 1)
    wait_flags(a, 4, 34, SRD2)
    stamp(a, 2)
    a(f"s_lshl_b32 s60, s{H}, 6")
    a(f"s_lshl_b32 s62, s{QB}, 3")
    a(f"s_add_u32 s60, s60, s62")
    a(f"s_lshl_b32 s62, s{QG}, 1")
    a(f"s_add_u32 s60, s60, s62")
    a(f"s_lshl_b32 s60, s60, 10")
    a(f"s_add_u32 s62, s60, 1024")
    for st in range(1):
        dma(a, vDo, SRD2, GS, KF + st * 4096, LB, st * 16384, tmp=63, mods=LD)
        dma(a, vDo, SRD2, GS, VF + st * 4096, LB, st * 16384 + 4096, tmp=63, mods=LD)
    a(f"buffer_load_dwordx4 {vr(QA,4)}, v{vDo}, s[{SRD2}:{SRD2+3}], s60 offen {LD}")
    a(f"buffer_load_dwordx4 {vr(QBf,4)}, v{vDo}, s[{SRD2}:{SRD2+3}], s62 offen {LD}")
    for st in range(1, 3):
        dma(a, vDo, SRD2, GS, KF + st * 4096, LB, st * 16384, tmp=63, mods=LD)
        dma(a, vDo, SRD2, GS, VF + st * 4096, LB, st * 16384 + 4096, tmp=63, mods=LD)
    NXT, SLOT = 66, 67
    a(f"s_add_u32 s{NXT}, s{GS}, {3*4096}")
    a(f"s_mov_b32 s{SLOT}, {3*16384}")
    a(f"s_mov_b32 s{STG}, 0")
    a("s_waitcnt vmcnt(4)")
    a("s_barrier")
    stamp(a, 3)

    def kread(buf, off):
        a(f"ds_read_b128 {vr(KB[buf],4)}, v{vKa} offset:{off}")

    def vread(buf, off):
        a(f"s_mov_b64 exec, s[{MSK}:{MSK+1}]")
        a(f"ds_read_b128 {vr(VB[buf],4)}, v{vVa} offset:{off}")
        a(f"ds_read_b128 {vr(VB[buf]+4,4)}, v{vVa} offset:{off+512}")
        a("s_mov_b64 exec, -1")

    kread(0, 0)
    vread(0, 0)
    a("s_waitcnt lgkmcnt(0)")
    a(f"v_mfma_f32_32x32x16_bf16 {vr(SA,16)}, {vr(KB[0],4)}, {vr(QA,4)}, 0")
    a("s_nop 7")
    a("s_nop 7")
    Lloop = f"{pfx}_loop"
    a(".p2align 6")
    a.label(Lloop)
    for b in range(4):
        cur, nxt = b & 1, (b & 1) ^ 1
        exA = [f"v_exp_f32 v{SA+i}, v{SA+i}" for i in range(16)]
        exB = [f"v_exp_f32 v{SB+i}, v{SB+i}" for i in range(16)]
        if b == 3:
            Lt, Lj = a.uid(pfx + "_t"), a.uid(pfx + "_j")
            a(f"s_cmp_lt_u32 s{STG}, 5")
            a(f"s_cbranch_scc0 {Lt}")
            a("s_waitcnt vmcnt(2)")
            a("s_barrier")
            a(f"s_add_u32 m0, s{LB}, s{SLOT}")
            a(f"s_add_u32 s60, s{NXT}, 0x{KF:x}")
            a(f"buffer_load_dwordx4 v{vDo}, s[{SRD2}:{SRD2+3}], s60 offen {LD} lds")
            a(f"s_add_u32 m0, m0, 4096")
            a(f"s_add_u32 s60, s{NXT}, 0x{VF:x}")
            a(f"buffer_load_dwordx4 v{vDo}, s[{SRD2}:{SRD2+3}], s60 offen {LD} lds")
            a(f"s_add_u32 s{NXT}, s{NXT}, 4096")
            a(f"s_add_u32 s{SLOT}, s{SLOT}, 16384")
            a(f"s_and_b32 s{SLOT}, s{SLOT}, 0xffff")
            a(f"s_branch {Lj}")
            a.label(Lt)
            a("s_waitcnt vmcnt(0)")
            a("s_barrier")
            a.label(Lj)
            a(f"v_add_u32 v{vKa}, 16384, v{vKa}")
            a(f"v_add_u32 v{vVa}, 16384, v{vVa}")
            a(f"v_and_b32 v{vKa}, 0xffff, v{vKa}")
            a(f"v_and_b32 v{vVa}, 0xffff, v{vVa}")
            noff = 0
        else:
            noff = (b + 1) * 1024
        a(exA[0])
        kread(nxt, noff)
        a(f"v_smfmac_f32_32x32x32_bf16 {vr(OB,16)}, {vr(VB[nxt],4)}, {vr(SB,8)}, v{IDX}")
        for e in exA[1:4]:
            a(e)
        a(f"v_smfmac_f32_32x32x32_bf16 {vr(OB,16)}, {vr(VB[nxt]+4,4)}, {vr(SB+8,8)}, v{IDX}")
        for e in exA[4:7]:
            a(e)
        a(f"v_mfma_f32_32x32x16_bf16 {vr(SB,16)}, {vr(KB[cur],4)}, {vr(QBf,4)}, 0")
        vread(nxt, noff)
        for e in exA[7:16]:
            a(e)
        a("s_waitcnt lgkmcnt(2)")
        a(exB[0])
        a(f"v_smfmac_f32_32x32x32_bf16 {vr(OA,16)}, {vr(VB[cur],4)}, {vr(SA,8)}, v{IDX}")
        for e in exB[1:4]:
            a(e)
        a(f"v_smfmac_f32_32x32x32_bf16 {vr(OA,16)}, {vr(VB[cur]+4,4)}, {vr(SA+8,8)}, v{IDX}")
        for e in exB[4:7]:
            a(e)
        a(f"v_mfma_f32_32x32x16_bf16 {vr(SA,16)}, {vr(KB[nxt],4)}, {vr(QA,4)}, 0")
        for e in exB[7:16]:
            a(e)
    a(f"s_add_u32 s{STG}, s{STG}, 1")
    a(f"s_cmp_lt_u32 s{STG}, 8")
    a(f"s_cbranch_scc1 {Lloop}")
    a(f"v_smfmac_f32_32x32x32_bf16 {vr(OB,16)}, {vr(VB[1],4)}, {vr(SB,8)}, v{IDX}")
    a(f"v_smfmac_f32_32x32x32_bf16 {vr(OB,16)}, {vr(VB[1]+4,4)}, {vr(SB+8,8)}, v{IDX}")
    stamp(a, 4)
    a("s_waitcnt lgkmcnt(0)")
    a(f"s_mul_i32 s60, s{QG}, {2*64*48}")
    a("v_mul_u32_u24 v4, 48, v0")
    a("v_add_u32 v4, s60, v4")
    a("s_barrier")
    a("s_nop 7")
    a("s_nop 3")
    Lw, Lp = f"{pfx}_kh0", f"{pfx}_pub"
    a(f"s_cmp_eq_u32 s{KH}, 0")
    a(f"s_cbranch_scc1 {Lw}")
    for t, O in enumerate((OA, OB)):
        for q in range(3):
            a(f"ds_write_b128 v4, {vr(O+4*q,4)} offset:{t*3072 + q*16}")
    a("s_waitcnt lgkmcnt(0)")
    a("s_barrier")
    a(f"s_branch {Lp}")
    a.label(Lw)
    a(f"s_lshl_b32 s60, s{QB}, 3")
    a(f"s_lshl_b32 s62, s{QG}, 1")
    a(f"s_add_u32 s60, s60, s62")
    a(f"s_lshl_b32 s60, s60, 5")
    a(f"s_add_u32 s60, s60, s{H}")
    a(f"s_lshl_b32 s60, s60, 10")
    a(f"s_add_u32 s60, s60, 0x{OF:x}")
    a("s_barrier")
    for t in range(2):
        for q in range(3):
            a(f"ds_read_b128 {vr(80+12*t+4*q,4)}, v4 offset:{t*3072 + q*16}")
    a("s_waitcnt lgkmcnt(0)")
    for t, O in enumerate((OA, OB)):
        for i in range(9):
            a(f"v_add_f32 v{O+i}, v{O+i}, v{80+12*t+i}")
    for t, O in enumerate((OA, OB)):
        a(f"v_rcp_f32 v{O+8}, v{O+8}")
    a("s_nop 0")
    for t, O in enumerate((OA, OB)):
        for i in range(8):
            a(f"v_mul_f32 v{O+i}, v{O+i}, v{O+8}")
        for i in range(4):
            a(f"v_cvt_pk_bf16_f32 v{80+4*t+i}, v{O+2*i}, v{O+2*i+1}")
        a(f"s_add_u32 s62, s60, {t*32*1024}")
        a(f"buffer_store_dwordx4 {vr(80+4*t,4)}, v{vDo}, s[{SRD2}:{SRD2+3}], s62 offen {ST}")
    a.label(Lp)
    a(f"s_lshl_b32 s64, s{QB}, 5")
    a(f"s_add_u32 s64, s64, s{H}")
    publish(a, 64, F_O, SRD2)
    stamp(a, 5)
    a(f"s_or_b32 s60, s{task}, s{S_W}")
    a("s_cmp_lg_u32 s60, 0")
    a(f"s_cbranch_scc1 {end_label}")
    groups = [(F_O + i * 64 * 128, 64) for i in range(4)] + [(F_QKV + i * 64 * 128, 64) for i in range(3)]
    Lep = f"{pfx}_ep"
    a("v_lshlrev_b32 v4, 7, v0")
    a("s_mov_b32 s66, 0")
    a.label(Lep)
    for gi, (base, n) in enumerate(groups):
        a(f"s_mov_b32 s60, 0x{base:x}")
        a(f"buffer_load_dword v{8+gi}, v4, s[{SRD2}:{SRD2+3}], s60 offen sc0 sc1")
    for gi in range(4):
        a(f"s_mov_b32 s60, 0x{F_H + gi*64*128:x}")
        a(f"buffer_load_dword v{16+gi}, v4, s[{SRD2}:{SRD2+3}], s60 offen sc0 sc1")
    a("s_waitcnt vmcnt(0)")
    a("s_mov_b64 s[62:63], -1")
    for gi in range(len(groups)):
        a(f"v_cmp_eq_u32 vcc, s{S_NONCE}, v{8+gi}")
        a("s_and_b64 s[62:63], s[62:63], vcc")
    a("s_mov_b32 s64, 0xf800f800")
    a("s_mov_b32 s65, 0xf800f800")
    for gi in range(4):
        a(f"v_cmp_eq_u32 vcc, s{S_NONCE}, v{16+gi}")
        a("s_or_b64 vcc, vcc, s[64:65]")
        a("s_and_b64 s[62:63], s[62:63], vcc")
    a("s_cmp_eq_u64 s[62:63], -1")
    a(f"s_cbranch_scc1 {Lep}_ok")
    a("s_add_u32 s66, s66, 1")
    a(f"s_cmp_lt_u32 s66, {roles.SPIN_MAX}")
    a(f"s_cbranch_scc0 {Lep}_ok")
    a("s_sleep 4")
    a(f"s_branch {Lep}")
    a.label(Lep + "_ok")
    a(f"v_mov_b32 v8, s{S_NONCE}")
    a("v_mov_b32 v9, 0")
    a(f"s_mov_b32 s60, 0x{EPOCH:x}")
    a("s_mov_b64 exec, 1")
    a(f"buffer_store_dword v8, v9, s[{SRD2}:{SRD2+3}], s60 offen sc0 sc1")
    a(f"s_branch {end_label}")


def build():
    HDR = open("cdna_kernels/" + NAME + ".s.ref").read().split("; Override launch")[0]
    out = [HDR.rstrip("\n")]
    out.append(f"; @launch grid=(512,1,1) block=(512,1,1) lds=81920")
    out.append('.amdgcn_target "amdgcn-amd-amdhsa--gfx950"')
    a = Asm()
    a("s_cmp_ge_u32 s2, 512")
    a("s_cbranch_scc1 L_exit")
    roles.common_prologue(a)
    a("s_cmp_ge_u32 s2, 256")
    a("s_cbranch_scc1 L_attn")
    a("s_cmp_ge_u32 s2, 192")
    a("s_cbranch_scc1 L_f_g2first")
    a("s_mov_b32 s4, s2")
    role_g1(a, "g1")
    a("s_cmp_lt_u32 s2, 112")
    a("s_cbranch_scc1 L_f_g2second")
    a("s_cmp_ge_u32 s2, 176")
    a("s_cbranch_scc1 L_f_g3")
    a("s_sub_u32 s4, s2, 112")
    role_gate(a, "gt")
    a("s_branch L_f_g3")
    a.label("L_f_g2second")
    a("s_lshr_b32 s4, s2, 3")
    a("s_add_u32 s4, s4, 8")
    a("s_branch L_f_g2")
    a.label("L_f_g2first")
    a("s_sub_u32 s4, s2, 192")
    a("s_lshr_b32 s4, s4, 3")
    a.label("L_f_g2")
    role_g2(a, "g2")
    a.label("L_f_g3")
    a("s_mov_b32 s4, s2")
    role_g3(a, "g3")
    a("s_branch L_end")
    a.label("L_attn")
    a("s_waitcnt lgkmcnt(0)")
    nonce_issue(a)
    a("s_sub_u32 s4, s2, 256")
    role_attn(a, "at", "L_end")
    a.label("L_end")
    stamp_flush(a, 0)
    a.label("L_exit")
    a("s_endpgm")
    out.append(kernel_header(NAME + "_kernel") + a.text())
    out.append(KD.format(name=NAME + "_kernel", vgpr=128, sgpr=96, accum=128))
    return "\n".join(out)


if __name__ == "__main__":
    if "--prof" in sys.argv:
        roles.PROF = True
    path = sys.argv[1] if len(sys.argv) > 1 and not sys.argv[1].startswith("--") else "cdna_kernels/" + NAME + ".s"
    open(path, "w").write(build())
    print("wrote", path)
```

```python
from asmlib import *

QF = 0
KF = 2 << 20
VF = 4 << 20
OF = 6 << 20
GV = 8 << 20
HF = 9 << 20
HSTEPS = 88
WS_BYTES = 16 << 20
FLG = 14 << 20
F_QKV = FLG
F_H = FLG + 192 * 128
F_O = F_H + 256 * 128
F_G = F_O + 256 * 128
EPOCH = F_G + 64 * 128
S_NONCE = 5
FUSED = False
ST_MODS = ""
LD_MODS = ""
SPIN_MAX = 1 << 15
QSCALE = 0x3EB8AA3B

S_W = 3
P_AX, P_WQKV, P_WO, P_BX, P_WG, P_WU, P_WD, P_GW = 16, 18, 20, 22, 24, 26, 28, 30
P_OUT, P_DBG, P_WS = 32, 34, 36
SRD0, SRD1, SRD2, SRD3 = 40, 44, 48, 52


PROF = False
PROF_OFF = 20 << 20
NSTAMP = 16
def stamp(a, i):
    if PROF:
        a("s_memtime s[88:89]")
        a("s_waitcnt lgkmcnt(0)")
        a(f"s_mov_b32 s{70+i}, s88")

def stamp_flush(a, kidx):
    if PROF:
        a("s_memtime s[86:87]")
        a("s_memrealtime s[88:89]")
        a("s_waitcnt vmcnt(0) lgkmcnt(0)")
        a("s_mov_b64 exec, 1")
        a("s_lshl_b32 s90, s2, 4")
        a("s_add_u32 s90, s90, s3")
        a("s_lshl_b32 s90, s90, 7")
        a(f"s_add_u32 s90, s90, 0x{PROF_OFF + kidx*(1<<20):x}")
        mk_srd(a, 92, P_WS, 32 << 20)
        for i in range(NSTAMP):
            a(f"v_mov_b32 v{8+i}, s{70+i}")
        a("v_mov_b32 v24, s86")
        a("v_mov_b32 v25, s88")
        a("v_mov_b32 v26, s68")
        a("v_mov_b32 v27, s69")
        a("v_mov_b32 v1, 0")
        for q in range(5):
            a(f"buffer_store_dwordx4 v[{8+4*q}:{11+4*q}], v1, s[92:95], s90 offen offset:{16*q}")

def common_prologue(a):
    if PROF:
        a("s_memrealtime s[68:69]")
        a("s_memtime s[70:71]")
        a("s_waitcnt lgkmcnt(0)")
        for i in range(1, NSTAMP):
            a(f"s_mov_b32 s{70+i}, 0")
    a("s_load_dwordx16 s[16:31], s[0:1], 0")
    a("s_load_dwordx4 s[32:35], s[0:1], 64")
    a("s_load_dwordx2 s[36:37], s[0:1], 80")
    a("v_lshrrev_b32 v1, 6, v0")
    a("v_and_b32 v0, 63, v0")
    a("s_nop 0")
    a("v_readfirstlane_b32 s3, v1")


S_EPOCH = 91
def nonce_issue(a):
    a(f"s_add_u32 s6, s{P_WS}, 0x{EPOCH:x}")
    a(f"s_addc_u32 s7, s{P_WS+1}, 0")
    a(f"s_load_dword s{S_EPOCH}, s[6:7], 0")


def nonce_get(a):
    a("s_waitcnt lgkmcnt(0)")
    a(f"s_add_u32 s{S_NONCE}, s{S_EPOCH}, 1")


load_nonce = None


def publish(a, idx_sreg, base, srd):
    L = a.uid("pub")
    nonce_get(a)
    a("s_waitcnt vmcnt(0)")
    a("s_barrier")
    a(f"s_cmp_lg_u32 s{S_W}, 0")
    a(f"s_cbranch_scc1 {L}")
    a(f"s_lshl_b32 s60, s{idx_sreg}, 7")
    a(f"s_add_u32 s60, s60, 0x{base:x}")
    a(f"v_mov_b32 v8, s{S_NONCE}")
    a("v_mov_b32 v9, 0")
    a("s_mov_b64 exec, 1")
    a(f"buffer_store_dword v8, v9, s[{srd}:{srd+3}], s60 offen sc0 sc1")
    a("s_mov_b64 exec, -1")
    a.label(L)


def wait_flags(a, vaddr, nlanes, srd, sleep=1, two_stage=False):
    L, L1, L2, Ld = a.uid("wf"), a.uid("wf1"), a.uid("wf2"), a.uid("wfd")
    mask = (1 << nlanes) - 1
    nonce_get(a)
    a(f"s_cmp_lg_u32 s{S_W}, 0")
    a(f"s_cbranch_scc1 {Ld}")
    a("s_mov_b32 s60, 0")
    a(f"s_mov_b32 s62, 0x{mask & 0xffffffff:x}")
    a(f"s_mov_b32 s63, 0x{mask >> 32:x}")
    if two_stage:
        a("s_mov_b64 exec, 1")
        a.label(L1)
        a(f"buffer_load_dword v8, v{vaddr}, s[{srd}:{srd+3}], 0 offen sc0 sc1")
        a("s_waitcnt vmcnt(0)")
        a(f"v_cmp_eq_u32 vcc, s{S_NONCE}, v8")
        a("s_cmp_lg_u64 vcc, 0")
        a(f"s_cbranch_scc1 {L2}")
        a("s_add_u32 s60, s60, 1")
        a(f"s_cmp_lt_u32 s60, {SPIN_MAX}")
        a(f"s_cbranch_scc0 {L2}")
        a("s_sleep 8")
        a(f"s_branch {L1}")
        a.label(L2)
    a("s_mov_b64 exec, s[62:63]")
    a.label(L)
    a(f"buffer_load_dword v8, v{vaddr}, s[{srd}:{srd+3}], 0 offen sc0 sc1")
    a("s_waitcnt vmcnt(0)")
    a(f"v_cmp_eq_u32 vcc, s{S_NONCE}, v8")
    a("s_cmp_eq_u64 vcc, s[62:63]")
    a(f"s_cbranch_scc1 {Ld}_x")
    a("s_add_u32 s60, s60, 1")
    a(f"s_cmp_lt_u32 s60, {SPIN_MAX}")
    a(f"s_cbranch_scc0 {Ld}_x")
    if sleep:
        a(f"s_sleep {sleep}")
    a(f"s_branch {L}")
    a.label(Ld + "_x")
    a("s_mov_b64 exec, -1")
    a.label(Ld)
    a("s_barrier")


def mk_srd(a, srd, ptr, nbytes, off=0):
    if off:
        a(f"s_add_u32 s{srd}, s{ptr}, 0x{off:x}")
        a(f"s_addc_u32 s{srd+1}, s{ptr+1}, 0")
    else:
        a(f"s_mov_b32 s{srd}, s{ptr}")
        a(f"s_mov_b32 s{srd+1}, s{ptr+1}")
    a(f"s_mov_b32 s{srd+2}, 0x{nbytes:x}")
    a(f"s_mov_b32 s{srd+3}, 0x20000")


def dma(a, voff, srd, sbase, soff_imm, lds_sbase, lds_imm, tmp=60, mods=""):
    a(f"s_add_u32 m0, s{lds_sbase}, 0x{lds_imm:x}")
    a(f"s_add_u32 s{tmp}, s{sbase}, 0x{soff_imm:x}")
    a(f"buffer_load_dwordx4 v{voff}, s[{srd}:{srd+3}], s{tmp} offen {mods} lds".replace("  ", " "))


def x_dma_voffset(a, vdst, t0, t1):
    a(f"s_and_b32 s60, s{S_W}, 1")
    a(f"s_lshl_b32 s60, s60, 2")
    a(f"v_lshrrev_b32 v{t0}, 4, v0")
    a(f"v_add_u32 v{t0}, s60, v{t0}")
    a(f"v_and_b32 v{t1}, 7, v0")
    a(f"v_xor_b32 v{t0}, v{t0}, v{t1}")
    a(f"v_lshlrev_b32 v{t0}, 4, v{t0}")
    a(f"v_lshrrev_b32 v{t1}, 3, v0")
    a(f"v_lshlrev_b32 v{t1}, 10, v{t1}")
    a(f"v_add_u32 v{vdst}, v{t0}, v{t1}")


def w256_dma_voffset(a, vdst, rowstride, t0, t1):
    a(f"v_lshrrev_b32 v{t0}, 4, v0")
    a(f"v_bfe_u32 v{t1}, v0, 2, 2")
    a(f"v_xor_b32 v{t1}, v{t1}, v{t0}")
    a(f"v_lshlrev_b32 v{t1}, 6, v{t1}")
    a(f"v_mul_u32_u24 v{t0}, {rowstride}, v{t0}")
    a(f"v_add_u32 v{t0}, v{t0}, v{t1}")
    a(f"v_and_b32 v{t1}, 3, v0")
    a(f"v_lshlrev_b32 v{t1}, 4, v{t1}")
    a(f"v_add_u32 v{vdst}, v{t0}, v{t1}")


def x_frag_addrs(a, vbase, wr_sreg, t0, t1):
    a(f"v_and_b32 v{t0}, 31, v0")
    a(f"v_bfe_u32 v{t1}, v0, 1, 3")
    a(f"v_lshrrev_b32 v{vbase}, 5, v0")
    a(f"v_xor_b32 v{t1}, v{t1}, v{vbase}")
    a(f"v_lshlrev_b32 v{t1}, 4, v{t1}")
    a(f"v_lshlrev_b32 v{t0}, 7, v{t0}")
    a(f"v_add_u32 v{t0}, v{t0}, v{t1}")
    a(f"s_lshl_b32 s60, s{wr_sreg}, 13")
    a(f"v_add_u32 v{vbase}, s60, v{t0}")
    for s in range(1, 4):
        a(f"v_xor_b32 v{vbase+s}, {32*s}, v{vbase}")


def w256_frag_addr(a, vdst, wc_sreg, region, t0, t1, t2):
    a(f"v_bfe_u32 v{t0}, v0, 2, 2")
    a(f"v_lshrrev_b32 v{t1}, 5, v0")
    a(f"v_lshlrev_b32 v{t1}, 3, v{t1}")
    a(f"v_add_u32 v{t1}, v{t1}, v{t0}")
    a(f"v_lshlrev_b32 v{t1}, 8, v{t1}")
    a(f"v_xor_b32 v{t0}, s{wc_sreg}, v{t0}")
    a(f"v_lshlrev_b32 v{t0}, 6, v{t0}")
    a(f"v_add_u32 v{t1}, v{t1}, v{t0}")
    a(f"v_bfe_u32 v{t0}, v0, 4, 1")
    a(f"v_lshlrev_b32 v{t0}, 5, v{t0}")
    a(f"v_and_b32 v{t2}, 3, v0")
    a(f"v_lshlrev_b32 v{t2}, 3, v{t2}")
    a(f"v_add3_u32 v{t1}, v{t1}, v{t0}, v{t2}")
    a(f"v_add_u32 v{vdst}, 0x{region:x}, v{t1}")


def role_g1(a, task, pfx, end_label):
    RT, CT, WR, WC = 38, 39, 56, 57
    XS, WS_, LB = 58, 59, 61
    vXo, vWo, vXa, vWa = 1, 2, 3, 7
    FX = [8, 20]
    FW = [16, 28]
    ACC = 32
    XREG, WREG = 0, 49152
    a.c("---- G1: QKV tile ----")
    a(f"s_and_b32 s62, s{task}, 7")
    a(f"s_lshr_b32 s63, s{task}, 3")
    a(f"s_lshr_b32 s{RT}, s62, 1")
    a(f"s_lshl_b32 s{RT}, s{RT}, 2")
    a(f"s_and_b32 s60, s63, 3")
    a(f"s_add_u32 s{RT}, s{RT}, s60")
    a(f"s_and_b32 s{CT}, s62, 1")
    a(f"s_mul_i32 s{CT}, s{CT}, 6")
    a(f"s_lshr_b32 s60, s63, 2")
    a(f"s_add_u32 s{CT}, s{CT}, s60")
    a(f"s_lshr_b32 s{WR}, s{S_W}, 2")
    a(f"s_and_b32 s{WC}, s{S_W}, 3")
    x_dma_voffset(a, vXo, 8, 9)
    w256_dma_voffset(a, vWo, 3072, 8, 9)
    x_frag_addrs(a, vXa, WR, 8, 9)
    w256_frag_addr(a, vWa, WC, WREG, 8, 9, 10)
    a(f"s_lshl_b32 s{XS}, s{RT}, 7")
    a(f"s_lshl_b32 s60, s{S_W}, 3")
    a(f"s_add_u32 s{XS}, s{XS}, s60")
    a(f"s_lshl_b32 s{XS}, s{XS}, 10")
    a(f"s_mul_i32 s{WS_}, s{S_W}, {4*3072}")
    a(f"s_lshl_b32 s60, s{CT}, 8")
    a(f"s_add_u32 s{WS_}, s{WS_}, s60")
    a(f"s_lshl_b32 s{LB}, s{S_W}, 10")
    a("s_waitcnt lgkmcnt(0)")
    mk_srd(a, SRD0, P_AX, 2048 * 1024)
    mk_srd(a, SRD1, P_WQKV, 512 * 3072)
    mk_srd(a, SRD2, P_WS, WS_BYTES)

    def xdma(j):
        slot = j % 3
        dma(a, vXo, SRD0, XS, j * 128, LB, XREG + slot * 16384)
        dma(a, vXo, SRD0, XS, j * 128 + 65536, LB, XREG + slot * 16384 + 8192)

    def wdma(j):
        slot = j % 2
        dma(a, vWo, SRD1, WS_, j * 64 * 3072, LB, WREG + slot * 16384)
        dma(a, vWo, SRD1, WS_, j * 64 * 3072 + 32 * 3072, LB, WREG + slot * 16384 + 8192)

    def reads(j, s, buf):
        xs, wsl = (j % 3) * 16384, (j % 2) * 16384
        for tt in range(2):
            a(f"ds_read_b128 {vr(FX[buf]+4*tt,4)}, v{vXa+s} offset:{xs + tt*4096}")
        a(f"ds_read_b64_tr_b16 {vr(FW[buf],2)}, v{vWa} offset:{wsl + s*4096}")
        a(f"ds_read_b64_tr_b16 {vr(FW[buf]+2,2)}, v{vWa} offset:{wsl + s*4096 + 1024}")

    def mainloop(vtype):
        stamp(a, 1)
        vm = VmTracker()
        xdma(0); vm.issue("X0", 2)
        wdma(0); vm.issue("W0", 2)
        xdma(1); vm.issue("X1", 2)
        wdma(1); vm.issue("W1", 2)
        xdma(2); vm.issue("X2", 2)
        for i in range(32):
            a(f"v_mov_b32 v{ACC+i}, 0")
        a(f"s_waitcnt vmcnt({vm.wait_for(['X0','W0'])})")
        a("s_barrier")
        stamp(a, 2)
        reads(0, 0, 0)
        buf = 0
        for j in range(8):
            for s in range(4):
                if s < 3:
                    reads(j, s + 1, buf ^ 1)
                    a("s_waitcnt lgkmcnt(4)")
                else:
                    a("s_waitcnt lgkmcnt(0)")
                    if j < 7:
                        a(f"s_waitcnt vmcnt({vm.wait_for([f'X{j+1}', f'W{j+1}'])})")
                        a("s_barrier")
                        if j + 2 < 8:
                            wdma(j + 2); vm.issue(f"W{j+2}", 2)
                        if j + 3 < 8:
                            xdma(j + 3); vm.issue(f"X{j+3}", 2)
                        reads(j + 1, 0, buf ^ 1)
                for tt in range(2):
                    acc = vr(ACC + 16 * tt, 16)
                    if vtype:
                        a(f"v_mfma_f32_32x32x16_bf16 {acc}, {vr(FX[buf]+4*tt,4)}, {vr(FW[buf],4)}, {acc}")
                    else:
                        a(f"v_mfma_f32_32x32x16_bf16 {acc}, {vr(FW[buf],4)}, {vr(FX[buf]+4*tt,4)}, {acc}")
                buf ^= 1

    Lv = f"{pfx}_v"
    a(f"s_cmp_ge_u32 s{CT}, 8")
    a(f"s_cbranch_scc1 {Lv}")
    mainloop(False)
    stamp(a, 3)
    a(f"s_and_b32 s60, s{CT}, 3")
    a(f"s_lshl_b32 s60, s60, 3")
    a(f"s_lshl_b32 s62, s{WC}, 1")
    a(f"s_add_u32 s60, s60, s62")
    a(f"s_lshl_b32 s60, s60, 16")
    a(f"s_lshl_b32 s62, s{RT}, 2")
    a(f"s_lshl_b32 s63, s{WR}, 1")
    a(f"s_add_u32 s62, s62, s63")
    a(f"s_lshl_b32 s62, s62, 10")
    a(f"s_add_u32 s60, s60, s62")
    a(f"v_lshlrev_b32 v1, 4, v0")
    a(f"s_cmp_lt_u32 s{CT}, 4")
    a(f"s_cselect_b32 s62, 0x{QSCALE:x}, 1.0")
    a(f"s_cbranch_scc1 {pfx}_isq")
    a(f"s_add_u32 s60, s60, 0x{KF:x}")
    a("v_and_b32 v2, 0x33, v0")
    a("v_bfe_u32 v3, v0, 2, 1")
    a("v_lshlrev_b32 v3, 3, v3")
    a("v_bfe_u32 v4, v0, 3, 1")
    a("v_lshlrev_b32 v4, 2, v4")
    a("v_or3_b32 v2, v2, v3, v4")
    a("v_lshlrev_b32 v1, 4, v2")
    a.label(f"{pfx}_isq")
    a("s_nop 7")
    a("s_nop 7")
    for tt in range(2):
        for i in range(16):
            a(f"v_mul_f32 v{ACC+16*tt+i}, s62, v{ACC+16*tt+i}")
        for hh in range(2):
            d = 8 + 4 * (2 * tt + hh)
            for i in range(4):
                r = ACC + 16 * tt + 8 * hh + 2 * i
                a(f"v_cvt_pk_bf16_f32 v{d+i}, v{r}, v{r+1}")
            a(f"s_add_u32 s63, s60, {hh*65536 + tt*1024}")
            a(f"buffer_store_dwordx4 {vr(d,4)}, v1, s[{SRD2}:{SRD2+3}], s63 offen {ST_MODS}")
    a(f"s_branch {end_label}")
    a.label(Lv)
    mainloop(True)
    stamp(a, 3)
    a(f"s_and_b32 s60, s{CT}, 3")
    a(f"s_lshl_b32 s60, s60, 3")
    a(f"s_lshl_b32 s62, s{WC}, 1")
    a(f"s_add_u32 s60, s60, s62")
    a(f"s_lshl_b32 s60, s60, 16")
    a(f"s_lshl_b32 s62, s{RT}, 2")
    a(f"s_lshl_b32 s63, s{WR}, 1")
    a(f"s_add_u32 s62, s62, s63")
    a(f"s_lshl_b32 s62, s62, 10")
    a(f"s_add_u32 s60, s60, s62")
    a(f"s_add_u32 s60, s60, 0x{VF:x}")
    a("v_bfe_u32 v2, v0, 4, 1")
    a("v_lshlrev_b32 v2, 16, v2")
    a("v_lshrrev_b32 v3, 5, v0")
    a("v_lshlrev_b32 v3, 8, v3")
    a("v_and_b32 v4, 15, v0")
    a("v_lshlrev_b32 v4, 4, v4")
    a("v_add3_u32 v1, v2, v3, v4")
    a("s_nop 7")
    a("s_nop 7")
    for tt in range(2):
        for jj in range(2):
            d = 8 + 4 * (2 * tt + jj)
            for i in range(4):
                r = ACC + 16 * tt + 8 * jj + 2 * i
                a(f"v_cvt_pk_bf16_f32 v{d+i}, v{r}, v{r+1}")
            a(f"s_add_u32 s63, s60, {tt*1024 + jj*512}")
            a(f"buffer_store_dwordx4 {vr(d,4)}, v1, s[{SRD2}:{SRD2+3}], s63 offen {ST_MODS}")
    a(f"s_branch {end_label}")


def role_gate(a, task, pfx, end_label):
    a.c("---- gate ----")
    a("s_waitcnt lgkmcnt(0)")
    mk_srd(a, SRD0, P_AX, 2048 * 1024)
    mk_srd(a, SRD1, P_GW, 1024)
    mk_srd(a, SRD2, P_WS, WS_BYTES)
    a(f"s_lshl_b32 s60, s{task}, 5")
    a(f"s_lshl_b32 s61, s{S_W}, 2")
    a(f"s_add_u32 s60, s60, s61")
    a(f"s_lshl_b32 s61, s60, 10")
    a("v_lshlrev_b32 v1, 4, v0")
    a(f"buffer_load_dwordx4 v[4:7], v1, s[{SRD1}:{SRD1+3}], 0 offen")
    for r in range(4):
        a(f"s_add_u32 s62, s61, {r*1024}")
        a(f"buffer_load_dwordx4 v[{8+4*r}:{11+4*r}], v1, s[{SRD0}:{SRD0+3}], s62 offen")
    a("s_waitcnt vmcnt(0)")
    for r in range(4):
        a(f"v_mov_b32 v{28+r}, 0")
    for i in range(4):
        for r in range(4):
            a(f"v_dot2_f32_bf16 v{28+r}, v{8+4*r+i}, v{4+i}, v{28+r}")
    a("s_nop 2")
    for sh in ("row_shr:1", "row_shr:2", "row_shr:4", "row_shr:8"):
        for r in range(4):
            a(f"v_add_f32_dpp v{28+r}, v{28+r}, v{28+r} {sh} row_mask:0xf bank_mask:0xf bound_ctrl:0")
        a("s_nop 1")
    for r in range(4):
        a(f"v_add_f32_dpp v{28+r}, v{28+r}, v{28+r} row_bcast:15 row_mask:0xa bank_mask:0xf")
    a("s_nop 1")
    for r in range(4):
        a(f"v_add_f32_dpp v{28+r}, v{28+r}, v{28+r} row_bcast:31 row_mask:0xc bank_mask:0xf")
    a("s_nop 1")
    for r in range(4):
        a(f"v_mul_f32 v{28+r}, 0xbfb8aa3b, v{28+r}")
    for r in range(4):
        a(f"v_exp_f32 v{28+r}, v{28+r}")
    a("s_nop 0")
    for r in range(4):
        a(f"v_add_f32 v{28+r}, 1.0, v{28+r}")
    for r in range(4):
        a(f"v_rcp_f32 v{28+r}, v{28+r}")
    a("s_nop 0")
    a("v_cmp_eq_u32 vcc, 63, v0")
    a("s_and_saveexec_b64 s[62:63], vcc")
    a(f"s_lshl_b32 s61, s60, 2")
    a(f"s_add_u32 s61, s61, 0x{GV:x}")
    a("v_mov_b32 v1, 0")
    a(f"buffer_store_dwordx4 v[28:31], v1, s[{SRD2}:{SRD2+3}], s61 offen {ST_MODS}")
    a(f"s_branch {end_label}")


def role_g2(a, task, pfx, end_label):
    RT, CT, WR, WC = 38, 39, 56, 57
    XS, WS_, LB = 58, 59, 61
    vXo, vWo, vXa, vWa = 1, 2, 3, 7
    FX = [8, 24]
    FG = [16, 32]
    FU = [20, 36]
    AG, AU = 40, 72
    XREG, WREG = 0, 32768
    a.c("---- G2: gate/up tile ----")
    a(f"s_and_b32 s62, s{task}, 7")
    a(f"s_lshr_b32 s63, s{task}, 3")
    a(f"s_and_b32 s60, s62, 1")
    a(f"s_mul_i32 s60, s60, 22")
    a(f"s_add_u32 s63, s63, s60")
    a(f"s_lshr_b32 s{CT}, s63, 2")
    a(f"s_lshr_b32 s{RT}, s62, 1")
    a(f"s_lshl_b32 s{RT}, s{RT}, 2")
    a(f"s_and_b32 s60, s63, 3")
    a(f"s_add_u32 s{RT}, s{RT}, s60")
    a(f"s_lshr_b32 s{WR}, s{S_W}, 2")
    a(f"s_and_b32 s{WC}, s{S_W}, 3")
    x_dma_voffset(a, vXo, 8, 9)
    w256_dma_voffset(a, vWo, 2752, 8, 9)
    x_frag_addrs(a, vXa, WR, 8, 9)
    w256_frag_addr(a, vWa, WC, WREG, 8, 9, 10)
    a(f"s_lshl_b32 s{XS}, s{RT}, 7")
    a(f"s_lshl_b32 s60, s{S_W}, 3")
    a(f"s_add_u32 s{XS}, s{XS}, s60")
    a(f"s_lshl_b32 s{XS}, s{XS}, 10")
    a(f"s_mul_i32 s{WS_}, s{S_W}, {4*2752}")
    a(f"s_lshl_b32 s60, s{CT}, 8")
    a(f"s_add_u32 s{WS_}, s{WS_}, s60")
    a(f"s_lshl_b32 s{LB}, s{S_W}, 10")
    a("s_waitcnt lgkmcnt(0)")
    mk_srd(a, SRD0, P_AX, 2048 * 1024)
    mk_srd(a, SRD1, P_WG, 512 * 2752)
    mk_srd(a, SRD3, P_WU, 512 * 2752)
    mk_srd(a, SRD2, P_WS, WS_BYTES)

    def xdma(j):
        slot = j % 2
        dma(a, vXo, SRD0, XS, j * 128, LB, XREG + slot * 16384)
        dma(a, vXo, SRD0, XS, j * 128 + 65536, LB, XREG + slot * 16384 + 8192)

    def wdma(u):
        slot = u % 3
        dma(a, vWo, SRD1, WS_, u * 32 * 2752, LB, WREG + slot * 16384)
        dma(a, vWo, SRD3, WS_, u * 32 * 2752, LB, WREG + slot * 16384 + 8192)

    def reads(u, s, buf):
        xs, wsl = ((u >> 1) % 2) * 16384, (u % 3) * 16384
        sx = 2 * (u & 1) + s
        for tt in range(2):
            a(f"ds_read_b128 {vr(FX[buf]+4*tt,4)}, v{vXa+sx} offset:{xs + tt*4096}")
        for F, mo in ((FG, 0), (FU, 8192)):
            a(f"ds_read_b64_tr_b16 {vr(F[buf],2)}, v{vWa} offset:{wsl + mo + s*4096}")
            a(f"ds_read_b64_tr_b16 {vr(F[buf]+2,2)}, v{vWa} offset:{wsl + mo + s*4096 + 1024}")

    stamp(a, 1)
    vm = VmTracker()
    xdma(0); vm.issue("X0", 2)
    wdma(0); vm.issue("W0", 2)
    wdma(1); vm.issue("W1", 2)
    xdma(1); vm.issue("X1", 2)
    wdma(2); vm.issue("W2", 2)
    for i in range(64):
        a(f"v_mov_b32 v{AG+i}, 0")
    a(f"s_waitcnt vmcnt({vm.wait_for(['X0','W0'])})")
    a("s_barrier")
    stamp(a, 2)
    reads(0, 0, 0)
    buf = 0
    for u in range(16):
        for s in range(2):
            if s == 0:
                reads(u, 1, buf ^ 1)
                a("s_waitcnt lgkmcnt(6)")
            else:
                a("s_waitcnt lgkmcnt(0)")
                if u < 15:
                    a(f"s_waitcnt vmcnt({vm.wait_for([f'W{u+1}', f'X{(u+1)>>1}'])})")
                    a("s_barrier")
                    if u + 3 < 16:
                        wdma(u + 3); vm.issue(f"W{u+3}", 2)
                    if (u & 1) and (u >> 1) + 2 < 8:
                        xdma((u >> 1) + 2); vm.issue(f"X{(u>>1)+2}", 2)
                    reads(u + 1, 0, buf ^ 1)
            for tt in range(2):
                ag, au = vr(AG + 16 * tt, 16), vr(AU + 16 * tt, 16)
                a(f"v_mfma_f32_32x32x16_bf16 {ag}, {vr(FG[buf],4)}, {vr(FX[buf]+4*tt,4)}, {ag}")
                a(f"v_mfma_f32_32x32x16_bf16 {au}, {vr(FU[buf],4)}, {vr(FX[buf]+4*tt,4)}, {au}")
            buf ^= 1
    stamp(a, 3)
    a(f"s_lshl_b32 s62, s{RT}, 2")
    a(f"s_lshl_b32 s63, s{WR}, 1")
    a(f"s_add_u32 s62, s62, s63")
    a(f"s_mul_i32 s62, s62, {HSTEPS}")
    a(f"s_lshl_b32 s60, s{CT}, 3")
    a(f"s_lshl_b32 s63, s{WC}, 1")
    a(f"s_add_u32 s60, s60, s63")
    a(f"s_cmp_ge_u32 s60, 86")
    a(f"s_cselect_b32 s64, 0, 1.0")
    a(f"s_add_u32 s60, s60, s62")
    a(f"s_lshl_b32 s60, s60, 10")
    a(f"s_add_u32 s60, s60, 0x{HF:x}")
    a("v_lshlrev_b32 v1, 4, v0")
    a("s_nop 7")
    a("s_nop 7")
    T = 8
    for tt in range(2):
        for hh in range(2):
            g0, u0 = AG + 16 * tt + 8 * hh, AU + 16 * tt + 8 * hh
            for i in range(8):
                a(f"v_mul_f32 v{T+i}, 0xbfb8aa3b, v{g0+i}")
            for i in range(8):
                a(f"v_exp_f32 v{T+i}, v{T+i}")
            for i in range(8):
                a(f"v_mul_f32 v{u0+i}, v{g0+i}, v{u0+i}")
            for i in range(8):
                a(f"v_add_f32 v{T+i}, 1.0, v{T+i}")
            for i in range(8):
                a(f"v_rcp_f32 v{T+i}, v{T+i}")
            for i in range(8):
                a(f"v_mul_f32 v{u0+i}, s64, v{u0+i}")
            for i in range(8):
                a(f"v_mul_f32 v{u0+i}, v{u0+i}, v{T+i}")
            d = 16 + 4 * (2 * tt + hh)
            for i in range(4):
                a(f"v_cvt_pk_bf16_f32 v{d+i}, v{u0+2*i}, v{u0+2*i+1}")
            a(f"s_add_u32 s63, s60, {tt*HSTEPS*1024 + hh*1024}")
            a(f"buffer_store_dwordx4 {vr(d,4)}, v1, s[{SRD2}:{SRD2+3}], s63 offen {ST_MODS}")
    a(f"s_branch {end_label}")


def role_attn(a, task, pfx, end_label):
    H, QB, QG, KH, ST = 38, 39, 56, 57, 58
    GS, LB = 59, 61
    MSK = 64
    vKa, vVa, vDo = 1, 2, 3
    SA, SB, OA, OB = 16, 32, 48, 64
    QA, QBf = 80, 84
    KB = [88, 92]
    VB = [96, 104]
    IDX = 112
    a.c("---- attention ----")
    a(f"s_and_b32 s62, s{task}, 7")
    a(f"s_lshr_b32 s63, s{task}, 3")
    a(f"s_lshl_b32 s{H}, s62, 2")
    a(f"s_lshr_b32 s60, s63, 3")
    a(f"s_add_u32 s{H}, s{H}, s60")
    a(f"s_and_b32 s{QB}, s63, 7")
    a(f"s_and_b32 s{QG}, s{S_W}, 3")
    a(f"s_lshr_b32 s{KH}, s{S_W}, 2")
    a(f"s_lshl_b32 s{GS}, s{H}, 16")
    a(f"s_lshl_b32 s60, s{KH}, 15")
    a(f"s_add_u32 s{GS}, s{GS}, s60")
    a(f"s_lshl_b32 s60, s{QG}, 10")
    a(f"s_add_u32 s{GS}, s{GS}, s60")
    a(f"s_lshl_b32 s{LB}, s{KH}, 13")
    a(f"s_add_u32 s{LB}, s{LB}, s60")
    a(f"v_lshlrev_b32 v{vDo}, 4, v0")
    a(f"s_lshl_b32 s60, s{KH}, 13")
    a(f"v_add_u32 v{vKa}, s60, v{vDo}")
    a(f"v_lshrrev_b32 v4, 5, v0")
    a(f"v_lshlrev_b32 v4, 8, v4")
    a(f"v_and_b32 v5, 15, v0")
    a(f"v_lshlrev_b32 v5, 4, v5")
    a(f"s_add_u32 s60, s60, 4096")
    a(f"v_add3_u32 v{vVa}, v4, v5, s60")
    a(f"s_mov_b32 s{MSK}, 0x0000ffff")
    a(f"s_mov_b32 s{MSK+1}, 0x0000ffff")
    a("s_waitcnt lgkmcnt(0)")
    mk_srd(a, SRD2, P_WS, WS_BYTES)

    def kvdma(st_imm=None, slot=None, dyn=False):
        if not dyn:
            dma(a, vDo, SRD2, GS, KF + st_imm * 4096, LB, slot * 16384)
            dma(a, vDo, SRD2, GS, VF + st_imm * 4096, LB, slot * 16384 + 4096)

    stamp(a, 1)
    a(f"s_lshl_b32 s60, s{H}, 6")
    a(f"s_lshl_b32 s62, s{QB}, 3")
    a(f"s_add_u32 s60, s60, s62")
    a(f"s_lshl_b32 s62, s{QG}, 1")
    a(f"s_add_u32 s60, s60, s62")
    a(f"s_lshl_b32 s60, s60, 10")
    a(f"s_add_u32 s62, s60, 1024")
    a(f"buffer_load_dwordx4 {vr(QA,4)}, v{vDo}, s[{SRD2}:{SRD2+3}], s60 offen")
    a(f"buffer_load_dwordx4 {vr(QBf,4)}, v{vDo}, s[{SRD2}:{SRD2+3}], s62 offen")
    for st in range(3):
        kvdma(st, st)
    for i in range(16):
        a(f"v_mov_b32 v{OA+i}, 0")
        a(f"v_mov_b32 v{OB+i}, 0")
        a(f"v_mov_b32 v{SB+i}, 0")
    a(f"v_mov_b32 v{IDX}, 0xdddddddd")
    a("v_and_b32 v4, 16, v0")
    a("v_cmp_ne_u32 vcc, 0, v4")
    a("v_mov_b32 v5, 0x3f803f80")
    a("s_nop 1")
    for i in range(16):
        a(f"v_cndmask_b32 v{VB[0]+i}, 0, v5, vcc")
    NXT, SLOT = 66, 67
    a(f"s_add_u32 s{NXT}, s{GS}, {3*4096}")
    a(f"s_mov_b32 s{SLOT}, {3*16384}")
    a(f"s_mov_b32 s{ST}, 0")
    a("s_waitcnt vmcnt(4)")
    a("s_barrier")
    stamp(a, 2)

    def kread(buf, off):
        a(f"ds_read_b128 {vr(KB[buf],4)}, v{vKa} offset:{off}")

    def vread(buf, off):
        a(f"s_mov_b64 exec, s[{MSK}:{MSK+1}]")
        a(f"ds_read_b128 {vr(VB[buf],4)}, v{vVa} offset:{off}")
        a(f"ds_read_b128 {vr(VB[buf]+4,4)}, v{vVa} offset:{off+512}")
        a("s_mov_b64 exec, -1")

    kread(0, 0)
    vread(0, 0)
    a("s_waitcnt lgkmcnt(0)")
    a(f"v_mfma_f32_32x32x16_bf16 {vr(SA,16)}, {vr(KB[0],4)}, {vr(QA,4)}, 0")
    a("s_nop 7")
    a("s_nop 7")
    Lloop = f"{pfx}_loop"
    a(".p2align 6")
    a.label(Lloop)
    for b in range(4):
        cur, nxt = b & 1, (b & 1) ^ 1
        exA = [f"v_exp_f32 v{SA+i}, v{SA+i}" for i in range(16)]
        exB = [f"v_exp_f32 v{SB+i}, v{SB+i}" for i in range(16)]
        if b == 3:
            Lt, Lj = a.uid(pfx + "_t"), a.uid(pfx + "_j")
            a(f"s_cmp_lt_u32 s{ST}, 5")
            a(f"s_cbranch_scc0 {Lt}")
            a("s_waitcnt vmcnt(2)")
            a("s_barrier")
            a(f"s_add_u32 m0, s{LB}, s{SLOT}")
            a(f"s_add_u32 s60, s{NXT}, 0x{KF:x}")
            a(f"buffer_load_dwordx4 v{vDo}, s[{SRD2}:{SRD2+3}], s60 offen lds")
            a(f"s_add_u32 m0, m0, 4096")
            a(f"s_add_u32 s60, s{NXT}, 0x{VF:x}")
            a(f"buffer_load_dwordx4 v{vDo}, s[{SRD2}:{SRD2+3}], s60 offen lds")
            a(f"s_add_u32 s{NXT}, s{NXT}, 4096")
            a(f"s_add_u32 s{SLOT}, s{SLOT}, 16384")
            a(f"s_and_b32 s{SLOT}, s{SLOT}, 0xffff")
            a(f"s_branch {Lj}")
            a.label(Lt)
            a("s_waitcnt vmcnt(0)")
            a("s_barrier")
            a.label(Lj)
            a(f"v_add_u32 v{vKa}, 16384, v{vKa}")
            a(f"v_add_u32 v{vVa}, 16384, v{vVa}")
            a(f"v_and_b32 v{vKa}, 0xffff, v{vKa}")
            a(f"v_and_b32 v{vVa}, 0xffff, v{vVa}")
            noff = 0
        else:
            noff = (b + 1) * 1024
        a(exA[0])
        kread(nxt, noff)
        a(f"v_smfmac_f32_32x32x32_bf16 {vr(OB,16)}, {vr(VB[nxt],4)}, {vr(SB,8)}, v{IDX}")
        for e in exA[1:4]:
            a(e)
        a(f"v_smfmac_f32_32x32x32_bf16 {vr(OB,16)}, {vr(VB[nxt]+4,4)}, {vr(SB+8,8)}, v{IDX}")
        for e in exA[4:7]:
            a(e)
        a(f"v_mfma_f32_32x32x16_bf16 {vr(SB,16)}, {vr(KB[cur],4)}, {vr(QBf,4)}, 0")
        vread(nxt, noff)
        for e in exA[7:16]:
            a(e)
        a("s_waitcnt lgkmcnt(2)")
        a(exB[0])
        a(f"v_smfmac_f32_32x32x32_bf16 {vr(OA,16)}, {vr(VB[cur],4)}, {vr(SA,8)}, v{IDX}")
        for e in exB[1:4]:
            a(e)
        a(f"v_smfmac_f32_32x32x32_bf16 {vr(OA,16)}, {vr(VB[cur]+4,4)}, {vr(SA+8,8)}, v{IDX}")
        for e in exB[4:7]:
            a(e)
        a(f"v_mfma_f32_32x32x16_bf16 {vr(SA,16)}, {vr(KB[nxt],4)}, {vr(QA,4)}, 0")
        for e in exB[7:16]:
            a(e)
    a(f"s_add_u32 s{ST}, s{ST}, 1")
    a(f"s_cmp_lt_u32 s{ST}, 8")
    a(f"s_cbranch_scc1 {Lloop}")
    stamp(a, 3)
    a(f"v_smfmac_f32_32x32x32_bf16 {vr(OB,16)}, {vr(VB[1],4)}, {vr(SB,8)}, v{IDX}")
    a(f"v_smfmac_f32_32x32x32_bf16 {vr(OB,16)}, {vr(VB[1]+4,4)}, {vr(SB+8,8)}, v{IDX}")
    a("s_waitcnt lgkmcnt(0)")
    a("s_barrier")
    a(f"s_mul_i32 s60, s{QG}, {2*64*48}")
    a("v_mul_u32_u24 v4, 48, v0")
    a("v_add_u32 v4, s60, v4")
    a("s_nop 7")
    a("s_nop 7")
    Lw = f"{pfx}_kh1"
    a(f"s_cmp_eq_u32 s{KH}, 0")
    a(f"s_cbranch_scc1 {Lw}")
    for t, O in enumerate((OA, OB)):
        for q in range(3):
            a(f"ds_write_b128 v4, {vr(O+4*q,4)} offset:{t*3072 + q*16}")
    a("s_waitcnt lgkmcnt(0)")
    a("s_barrier")
    a(f"s_branch {end_label}")
    a.label(Lw)
    a("s_barrier")
    for t in range(2):
        for q in range(3):
            a(f"ds_read_b128 {vr(80+12*t+4*q,4)}, v4 offset:{t*3072 + q*16}")
    a("s_waitcnt lgkmcnt(0)")
    for t, O in enumerate((OA, OB)):
        for i in range(9):
            a(f"v_add_f32 v{O+i}, v{O+i}, v{80+12*t+i}")
    for t, O in enumerate((OA, OB)):
        a(f"v_rcp_f32 v{O+8}, v{O+8}")
    a("s_nop 0")
    a(f"s_lshl_b32 s60, s{QB}, 3")
    a(f"s_lshl_b32 s62, s{QG}, 1")
    a(f"s_add_u32 s60, s60, s62")
    a(f"s_lshl_b32 s60, s60, 5")
    a(f"s_add_u32 s60, s60, s{H}")
    a(f"s_lshl_b32 s60, s60, 10")
    a(f"s_add_u32 s60, s60, 0x{OF:x}")
    for t, O in enumerate((OA, OB)):
        for i in range(8):
            a(f"v_mul_f32 v{O+i}, v{O+i}, v{O+8}")
        for i in range(4):
            a(f"v_cvt_pk_bf16_f32 v{80+4*t+i}, v{O+2*i}, v{O+2*i+1}")
        a(f"s_add_u32 s62, s60, {t*32*1024}")
        a(f"buffer_store_dwordx4 {vr(80+4*t,4)}, v{vDo}, s[{SRD2}:{SRD2+3}], s62 offen {ST_MODS}")
    a(f"s_branch {end_label}")


def role_g3(a, task, pfx, end_label):
    RT, CT, TR, TC, KHh = 38, 39, 56, 57, 58
    AS, WS_, LB = 59, 62, 61
    vAo, vWo, vAa, vWa, vG = 1, 2, 3, 4, 5
    FA = [8, 16]
    FW = [12, 20]
    ACCB, ACCA = 32, 48
    NS = 5
    a.c("---- G3: final tile ----")
    a(f"s_and_b32 s63, s{task}, 7")
    a(f"s_lshr_b32 s64, s{task}, 3")
    a(f"s_lshl_b32 s{RT}, s63, 2")
    a(f"s_and_b32 s60, s64, 3")
    a(f"s_add_u32 s{RT}, s{RT}, s60")
    a(f"s_lshr_b32 s{CT}, s64, 2")
    a(f"s_bfe_u32 s{TR}, s{S_W}, 0x10001")
    a(f"s_and_b32 s{TC}, s{S_W}, 1")
    a(f"s_lshr_b32 s{KHh}, s{S_W}, 2")
    a(f"v_lshlrev_b32 v{vAo}, 4, v0")
    a("v_bfe_u32 v8, v0, 2, 1")
    a("v_bfe_u32 v9, v0, 4, 1")
    a("v_xor_b32 v8, v8, v9")
    a("v_lshlrev_b32 v8, 6, v8")
    a("v_and_b32 v9, 3, v0")
    a("v_lshlrev_b32 v9, 4, v9")
    a("v_lshrrev_b32 v10, 3, v0")
    a("v_lshlrev_b32 v10, 10, v10")
    a(f"v_add3_u32 v{vWo}, v8, v9, v10")
    a(f"s_lshl_b32 s60, s{TR}, 12")
    a(f"s_lshl_b32 s63, s{KHh}, 11")
    a(f"s_add_u32 s60, s60, s63")
    a(f"v_add_u32 v{vAa}, s60, v{vAo}")
    a("v_lshrrev_b32 v8, 5, v0")
    a("v_lshlrev_b32 v8, 2, v8")
    a("v_bfe_u32 v9, v0, 2, 2")
    a("v_add_u32 v8, v8, v9")
    a("v_lshlrev_b32 v8, 7, v8")
    a("v_bfe_u32 v9, v0, 3, 1")
    a(f"v_xor_b32 v9, s{TC}, v9")
    a("v_lshlrev_b32 v9, 6, v9")
    a("v_add_u32 v8, v8, v9")
    a("v_bfe_u32 v9, v0, 4, 1")
    a("v_lshlrev_b32 v9, 5, v9")
    a("v_and_b32 v10, 3, v0")
    a("v_lshlrev_b32 v10, 3, v10")
    a("v_add3_u32 v8, v8, v9, v10")
    a(f"s_lshl_b32 s60, s{KHh}, 12")
    a(f"s_add_u32 s60, s60, 8192")
    a(f"v_add_u32 v{vWa}, s60, v8")
    AH, AO = 65, 66
    a(f"s_lshl_b32 s60, s{RT}, 1")
    a(f"s_add_u32 s60, s60, s{KHh}")
    a(f"s_and_b32 s63, s{S_W}, 3")
    a(f"s_mul_i32 s{AH}, s60, {HSTEPS}")
    a(f"s_add_u32 s{AH}, s{AH}, s63")
    a(f"s_lshl_b32 s{AH}, s{AH}, 10")
    a(f"s_add_u32 s{AH}, s{AH}, 0x{HF:x}")
    a(f"s_lshl_b32 s{AO}, s60, 5")
    a(f"s_add_u32 s{AO}, s{AO}, s63")
    a(f"s_lshl_b32 s{AO}, s{AO}, 10")
    a(f"s_add_u32 s{AO}, s{AO}, 0x{OF:x}")
    a(f"s_lshl_b32 s{WS_}, s{S_W}, 13")
    a(f"s_lshl_b32 s60, s{CT}, 7")
    a(f"s_add_u32 s{WS_}, s{WS_}, s60")
    a(f"s_lshl_b32 s{LB}, s{S_W}, 10")
    a(f"s_lshl_b32 s60, s{RT}, 6")
    a(f"s_lshl_b32 s63, s{TR}, 5")
    a(f"s_add_u32 s60, s60, s63")
    a(f"s_lshl_b32 s60, s60, 2")
    a(f"s_add_u32 s67, s60, 0x{GV:x}")
    a("v_and_b32 v8, 31, v0")
    a("v_lshlrev_b32 v8, 2, v8")
    a("s_waitcnt lgkmcnt(0)")
    mk_srd(a, SRD0, P_WD, 1376 * 1024)
    mk_srd(a, SRD1, P_WO, 512 * 1024)
    mk_srd(a, SRD2, P_WS, WS_BYTES)
    mk_srd(a, SRD3, P_OUT, 2048 * 1024)
    vm = VmTracker()
    a(f"buffer_load_dword v{vG}, v8, s[{SRD2}:{SRD2+3}], s67 offen")
    vm.issue("G")
    stages = [("H", i) for i in range(22)] + [("O", i) for i in range(8)]

    def sdma(n):
        kind, i = stages[n]
        slot = n % NS
        if kind == "H":
            dma(a, vAo, SRD2, AH, i * 4096, LB, slot * 16384)
            dma(a, vWo, SRD0, WS_, i * 64 * 1024, LB, slot * 16384 + 8192)
        else:
            dma(a, vAo, SRD2, AO, i * 4096, LB, slot * 16384)
            dma(a, vWo, SRD1, WS_, i * 64 * 1024, LB, slot * 16384 + 8192)
        vm.issue(f"S{n}", 2)

    vAa2, vWa2 = 6, 7
    a(f"v_add_u32 v{vAa2}, 0x10000, v{vAa}")
    a(f"v_add_u32 v{vWa2}, 0x10000, v{vWa}")

    def reads(n, s, buf):
        slot = n % NS
        ra, rw, so = (vAa, vWa, slot * 16384) if slot < 4 else (vAa2, vWa2, 0)
        a(f"ds_read_b128 {vr(FA[buf],4)}, v{ra} offset:{so + s*1024}")
        a(f"ds_read_b64_tr_b16 {vr(FW[buf],2)}, v{rw} offset:{so + s*2048}")
        a(f"ds_read_b64_tr_b16 {vr(FW[buf]+2,2)}, v{rw} offset:{so + s*2048 + 1024}")

    stamp(a, 1)
    for n in range(NS):
        sdma(n)
    for i in range(32):
        a(f"v_mov_b32 v{ACCB+i}, 0")
    a(f"s_waitcnt vmcnt({vm.wait_for(['S0'])})")
    a("s_barrier")
    stamp(a, 2)
    reads(0, 0, 0)
    buf = 0
    N = len(stages)
    for n in range(N):
        acc = ACCB if stages[n][0] == "H" else ACCA
        for s in range(2):
            if s == 0:
                reads(n, 1, buf ^ 1)
                a("s_waitcnt lgkmcnt(3)")
            else:
                a("s_waitcnt lgkmcnt(0)")
                if n < N - 1:
                    a(f"s_waitcnt vmcnt({vm.wait_for([f'S{n+1}'])})")
                    a("s_barrier")
                    if n + NS < N:
                        sdma(n + NS)
                    reads(n + 1, 0, buf ^ 1)
            a(f"v_mfma_f32_32x32x16_bf16 {vr(acc,16)}, {vr(FW[buf],4)}, {vr(FA[buf],4)}, {vr(acc,16)}")
            buf ^= 1
    stamp(a, 3)
    a("s_nop 7")
    a("s_nop 7")
    a(f"v_sub_f32 v6, 1.0, v{vG}")
    for i in range(16):
        a(f"v_mul_f32 v{ACCB+i}, v6, v{ACCB+i}")
    for i in range(16):
        a(f"v_fmac_f32 v{ACCB+i}, v{vG}, v{ACCA+i}")
    a("s_barrier")
    a("v_and_b32 v8, 31, v0")
    a(f"s_lshl_b32 s60, s{TR}, 5")
    a("v_add_u32 v8, s60, v8")
    a("v_mul_u32_u24 v8, 272, v8")
    a("v_lshrrev_b32 v9, 5, v0")
    a("v_lshlrev_b32 v9, 4, v9")
    a(f"s_mul_i32 s60, s{KHh}, {64*272}")
    a(f"s_lshl_b32 s63, s{TC}, 7")
    a("s_add_u32 s60, s60, s63")
    a("v_add3_u32 v8, v8, v9, s60")
    for q in range(4):
        a(f"ds_write_b128 v8, {vr(ACCB+4*q,4)} offset:{q*32}")
    a("s_waitcnt lgkmcnt(0)")
    a("s_barrier")
    a(f"s_lshl_b32 s60, s{S_W}, 3")
    a("v_lshrrev_b32 v8, 3, v0")
    a("v_add_u32 v8, s60, v8")
    a("v_and_b32 v9, 7, v0")
    a("v_mul_u32_u24 v10, 272, v8")
    a("v_lshlrev_b32 v11, 5, v9")
    a("v_add_u32 v10, v10, v11")
    a("ds_read_b128 v[12:15], v10")
    a("ds_read_b128 v[16:19], v10 offset:16")
    a(f"ds_read_b128 v[20:23], v10 offset:{64*272}")
    a(f"ds_read_b128 v[24:27], v10 offset:{64*272+16}")
    a("v_lshlrev_b32 v8, 10, v8")
    a("v_lshlrev_b32 v9, 4, v9")
    a("v_add_u32 v8, v8, v9")
    a(f"s_lshl_b32 s60, s{RT}, 16")
    a(f"s_lshl_b32 s63, s{CT}, 7")
    a("s_add_u32 s60, s60, s63")
    a("s_waitcnt lgkmcnt(0)")
    for i in range(8):
        a(f"v_add_f32 v{12+i}, v{12+i}, v{20+i}")
    for i in range(4):
        a(f"v_cvt_pk_bf16_f32 v{28+i}, v{12+2*i}, v{13+2*i}")
    a(f"buffer_store_dwordx4 v[28:31], v8, s[{SRD3}:{SRD3+3}], s60 offen")
    a(f"s_branch {end_label}")
```

```python
import sys
from asmlib import *
import roles
from roles import (QF, KF, VF, OF, GV, HF, HSTEPS, WS_BYTES, QSCALE, S_W, P_AX, P_WQKV, P_WO, P_WG, P_WU, P_WD, P_GW,
                   P_OUT, P_DBG, P_WS, SRD0, SRD1, SRD2, SRD3, F_QKV, F_H, F_O, F_G, EPOCH, S_NONCE,
                   mk_srd, dma, x_dma_voffset, w256_dma_voffset, x_frag_addrs, w256_frag_addr,
                   nonce_issue, publish, wait_flags, stamp, stamp_flush)

NAME = "gated_mix__mha_block__swiglu_ffn__prompt"
ST = "sc0 sc1"
LD = "sc1"

OPT = dict(prefetch=True)


def gemm_xw_mainloop(a, cfg):
    pass


def role_g1(a, pfx):
    RT, CT, WR, WC = 38, 39, 56, 57
    XS, WS_, LB = 58, 59, 61
    vXo, vWo, vXa, vWa = 1, 2, 3, 7
    FX = [8, 20]
    FW = [16, 28]
    ACC = 32
    XREG, WREG = 0, 49152
    task = 4
    a.c("---- G1: QKV tile ----")
    a(f"s_and_b32 s62, s{task}, 7")
    a(f"s_lshr_b32 s63, s{task}, 3")
    a(f"s_lshr_b32 s{RT}, s62, 1")
    a(f"s_lshl_b32 s{RT}, s{RT}, 2")
    a(f"s_and_b32 s60, s63, 3")
    a(f"s_add_u32 s{RT}, s{RT}, s60")
    a(f"s_and_b32 s{CT}, s62, 1")
    a(f"s_mul_i32 s{CT}, s{CT}, 6")
    a(f"s_lshr_b32 s60, s63, 2")
    a(f"s_add_u32 s{CT}, s{CT}, s60")
    a(f"s_lshr_b32 s{WR}, s{S_W}, 2")
    a(f"s_and_b32 s{WC}, s{S_W}, 3")
    x_dma_voffset(a, vXo, 8, 9)
    w256_dma_voffset(a, vWo, 3072, 8, 9)
    a(f"s_lshl_b32 s{XS}, s{RT}, 7")
    a(f"s_lshl_b32 s60, s{S_W}, 3")
    a(f"s_add_u32 s{XS}, s{XS}, s60")
    a(f"s_lshl_b32 s{XS}, s{XS}, 10")
    a(f"s_mul_i32 s{WS_}, s{S_W}, {4*3072}")
    a(f"s_lshl_b32 s60, s{CT}, 8")
    a(f"s_add_u32 s{WS_}, s{WS_}, s60")
    a(f"s_lshl_b32 s{LB}, s{S_W}, 10")
    a("s_waitcnt lgkmcnt(0)")
    mk_srd(a, SRD0, P_AX, 2048 * 1024)
    mk_srd(a, SRD1, P_WQKV, 512 * 3072)

    def xdma(j):
        slot = j % 3
        dma(a, vXo, SRD0, XS, j * 128, LB, XREG + slot * 16384)
        dma(a, vXo, SRD0, XS, j * 128 + 65536, LB, XREG + slot * 16384 + 8192)

    def wdma(j):
        slot = j % 2
        dma(a, vWo, SRD1, WS_, j * 64 * 3072, LB, WREG + slot * 16384)
        dma(a, vWo, SRD1, WS_, j * 64 * 3072 + 32 * 3072, LB, WREG + slot * 16384 + 8192)

    def reads(j, s, buf):
        xs, wsl = (j % 3) * 16384, (j % 2) * 16384
        for tt in range(2):
            a(f"ds_read_b128 {vr(FX[buf]+4*tt,4)}, v{vXa+s} offset:{xs + tt*4096}")
        a(f"ds_read_b64_tr_b16 {vr(FW[buf],2)}, v{vWa} offset:{wsl + s*4096}")
        a(f"ds_read_b64_tr_b16 {vr(FW[buf]+2,2)}, v{vWa} offset:{wsl + s*4096 + 1024}")

    stamp(a, 1)
    vm0 = VmTracker()
    xdma(0); vm0.issue("X0", 2)
    wdma(0); vm0.issue("W0", 2)
    xdma(1); vm0.issue("X1", 2)
    wdma(1); vm0.issue("W1", 2)
    xdma(2); vm0.issue("X2", 2)
    nonce_issue(a)
    mk_srd(a, SRD2, P_WS, WS_BYTES)
    x_frag_addrs(a, vXa, WR, 8, 9)
    w256_frag_addr(a, vWa, WC, WREG, 8, 9, 10)
    for i in range(32):
        a(f"v_mov_b32 v{ACC+i}, 0")

    def mainloop(vtype):
        vm = VmTracker(); vm.ops = list(vm0.ops)
        a(f"s_waitcnt vmcnt({vm.wait_for(['X0','W0'])})")
        a("s_barrier")
        stamp(a, 2)
        reads(0, 0, 0)
        buf = 0
        for j in range(8):
            for s in range(4):
                if s < 3:
                    reads(j, s + 1, buf ^ 1)
                    a("s_waitcnt lgkmcnt(4)")
                else:
                    a("s_waitcnt lgkmcnt(0)")
                    if j < 7:
                        a(f"s_waitcnt vmcnt({vm.wait_for([f'X{j+1}', f'W{j+1}'])})")
                        a("s_barrier")
                        if j + 2 < 8:
                            wdma(j + 2); vm.issue(f"W{j+2}", 2)
                        if j + 3 < 8:
                            xdma(j + 3); vm.issue(f"X{j+3}", 2)
                        reads(j + 1, 0, buf ^ 1)
                for tt in range(2):
                    acc = vr(ACC + 16 * tt, 16)
                    if vtype:
                        a(f"v_mfma_f32_32x32x16_bf16 {acc}, {vr(FX[buf]+4*tt,4)}, {vr(FW[buf],4)}, {acc}")
                    else:
                        a(f"v_mfma_f32_32x32x16_bf16 {acc}, {vr(FW[buf],4)}, {vr(FX[buf]+4*tt,4)}, {acc}")
                buf ^= 1
        stamp(a, 3)

    def tile_base():
        a(f"s_and_b32 s60, s{CT}, 3")
        a(f"s_lshl_b32 s60, s60, 3")
        a(f"s_lshl_b32 s62, s{WC}, 1")
        a(f"s_add_u32 s60, s60, s62")
        a(f"s_lshl_b32 s60, s60, 16")
        a(f"s_lshl_b32 s62, s{RT}, 2")
        a(f"s_lshl_b32 s63, s{WR}, 1")
        a(f"s_add_u32 s62, s62, s63")
        a(f"s_lshl_b32 s62, s62, 10")
        a(f"s_add_u32 s60, s60, s62")

    Lv, Ld = f"{pfx}_v", f"{pfx}_pub"
    a(f"s_cmp_ge_u32 s{CT}, 8")
    a(f"s_cbranch_scc1 {Lv}")
    mainloop(False)
    tile_base()
    a(f"v_lshlrev_b32 v1, 4, v0")
    a(f"s_cmp_lt_u32 s{CT}, 4")
    a(f"s_cselect_b32 s62, 0x{QSCALE:x}, 1.0")
    a(f"s_cbranch_scc1 {pfx}_isq")
    a(f"s_add_u32 s60, s60, 0x{KF:x}")
    a("v_and_b32 v2, 0x33, v0")
    a("v_bfe_u32 v3, v0, 2, 1")
    a("v_lshlrev_b32 v3, 3, v3")
    a("v_bfe_u32 v4, v0, 3, 1")
    a("v_lshlrev_b32 v4, 2, v4")
    a("v_or3_b32 v2, v2, v3, v4")
    a("v_lshlrev_b32 v1, 4, v2")
    a.label(f"{pfx}_isq")
    a("s_nop 7")
    a("s_nop 3")
    for tt in range(2):
        for hh in range(2):
            for i in range(8):
                r = ACC + 16 * tt + 8 * hh + i
                a(f"v_mul_f32 v{r}, s62, v{r}")
            d = 8 + 4 * (2 * tt + hh)
            for i in range(4):
                r = ACC + 16 * tt + 8 * hh + 2 * i
                a(f"v_cvt_pk_bf16_f32 v{d+i}, v{r}, v{r+1}")
            a(f"s_add_u32 s63, s60, {hh*65536 + tt*1024}")
            a(f"buffer_store_dwordx4 {vr(d,4)}, v1, s[{SRD2}:{SRD2+3}], s63 offen {ST}")
    a(f"s_branch {Ld}")
    a.label(Lv)
    mainloop(True)
    tile_base()
    a(f"s_add_u32 s60, s60, 0x{VF:x}")
    a("v_bfe_u32 v2, v0, 4, 1")
    a("v_lshlrev_b32 v2, 16, v2")
    a("v_lshrrev_b32 v3, 5, v0")
    a("v_lshlrev_b32 v3, 8, v3")
    a("v_and_b32 v4, 15, v0")
    a("v_lshlrev_b32 v4, 4, v4")
    a("v_add3_u32 v1, v2, v3, v4")
    a("s_nop 7")
    a("s_nop 3")
    for tt in range(2):
        for jj in range(2):
            d = 8 + 4 * (2 * tt + jj)
            for i in range(4):
                r = ACC + 16 * tt + 8 * jj + 2 * i
                a(f"v_cvt_pk_bf16_f32 v{d+i}, v{r}, v{r+1}")
            a(f"s_add_u32 s63, s60, {tt*1024 + jj*512}")
            a(f"buffer_store_dwordx4 {vr(d,4)}, v1, s[{SRD2}:{SRD2+3}], s63 offen {ST}")
    a.label(Ld)
    a(f"s_lshl_b32 s64, s{CT}, 4")
    a(f"s_add_u32 s64, s64, s{RT}")
    publish(a, 64, F_QKV, SRD2)
    stamp(a, 4)


def role_gate(a, pfx):
    task = 4
    a.c("---- gate ----")
    mk_srd(a, SRD0, P_AX, 2048 * 1024)
    mk_srd(a, SRD1, P_GW, 1024)
    mk_srd(a, SRD2, P_WS, WS_BYTES)
    a(f"s_lshl_b32 s60, s{task}, 5")
    a(f"s_lshl_b32 s61, s{S_W}, 2")
    a(f"s_add_u32 s65, s60, s61")
    a(f"s_lshl_b32 s61, s65, 10")
    a("v_lshlrev_b32 v1, 4, v0")
    a(f"buffer_load_dwordx4 v[4:7], v1, s[{SRD1}:{SRD1+3}], 0 offen")
    for r in range(4):
        a(f"s_add_u32 s62, s61, {r*1024}")
        a(f"buffer_load_dwordx4 v[{8+4*r}:{11+4*r}], v1, s[{SRD0}:{SRD0+3}], s62 offen")
    a("s_waitcnt vmcnt(0)")
    for r in range(4):
        a(f"v_mov_b32 v{28+r}, 0")
    for i in range(4):
        for r in range(4):
            a(f"v_dot2_f32_bf16 v{28+r}, v{8+4*r+i}, v{4+i}, v{28+r}")
    a("s_nop 2")
    for sh in ("row_shr:1", "row_shr:2", "row_shr:4", "row_shr:8"):
        for r in range(4):
            a(f"v_add_f32_dpp v{28+r}, v{28+r}, v{28+r} {sh} row_mask:0xf bank_mask:0xf bound_ctrl:0")
        a("s_nop 1")
    for r in range(4):
        a(f"v_add_f32_dpp v{28+r}, v{28+r}, v{28+r} row_bcast:15 row_mask:0xa bank_mask:0xf")
    a("s_nop 1")
    for r in range(4):
        a(f"v_add_f32_dpp v{28+r}, v{28+r}, v{28+r} row_bcast:31 row_mask:0xc bank_mask:0xf")
    a("s_nop 1")
    for r in range(4):
        a(f"v_mul_f32 v{28+r}, 0xbfb8aa3b, v{28+r}")
    for r in range(4):
        a(f"v_exp_f32 v{28+r}, v{28+r}")
    a("s_nop 0")
    for r in range(4):
        a(f"v_add_f32 v{28+r}, 1.0, v{28+r}")
    for r in range(4):
        a(f"v_rcp_f32 v{28+r}, v{28+r}")
    a("s_nop 0")
    a("s_mov_b32 s62, 0")
    a("s_mov_b32 s63, 0x80000000")
    a("s_mov_b64 exec, s[62:63]")
    a(f"s_lshl_b32 s61, s65, 2")
    a(f"s_add_u32 s61, s61, 0x{GV:x}")
    a("v_mov_b32 v1, 0")
    a(f"buffer_store_dwordx4 v[28:31], v1, s[{SRD2}:{SRD2+3}], s61 offen {ST}")
    a("s_mov_b64 exec, -1")
    publish(a, task, F_G, SRD2)


def role_g2(a, pfx):
    RT, CT, WR, WC = 38, 39, 56, 57
    XS, WS_, LB = 58, 59, 61
    vXo, vWo, vXa, vWa = 1, 2, 3, 7
    FX = [8, 24]
    FG = [16, 32]
    FU = [20, 36]
    AG, AU = 40, 72
    XREG, WREG = 0, 32768
    a.c("---- G2: gate/up tile ----")
    a(f"s_and_b32 s62, s2, 7")
    a(f"s_and_b32 s60, s62, 1")
    a(f"s_mul_i32 s60, s60, 22")
    a(f"s_add_u32 s63, s4, s60")
    a(f"s_lshr_b32 s{CT}, s63, 2")
    a(f"s_lshr_b32 s{RT}, s62, 1")
    a(f"s_lshl_b32 s{RT}, s{RT}, 2")
    a(f"s_and_b32 s60, s63, 3")
    a(f"s_add_u32 s{RT}, s{RT}, s60")
    a(f"s_lshr_b32 s{WR}, s{S_W}, 2")
    a(f"s_and_b32 s{WC}, s{S_W}, 3")
    x_dma_voffset(a, vXo, 8, 9)
    w256_dma_voffset(a, vWo, 2752, 8, 9)
    a(f"s_lshl_b32 s{XS}, s{RT}, 7")
    a(f"s_lshl_b32 s60, s{S_W}, 3")
    a(f"s_add_u32 s{XS}, s{XS}, s60")
    a(f"s_lshl_b32 s{XS}, s{XS}, 10")
    a(f"s_mul_i32 s{WS_}, s{S_W}, {4*2752}")
    a(f"s_lshl_b32 s60, s{CT}, 8")
    a(f"s_add_u32 s{WS_}, s{WS_}, s60")
    a(f"s_lshl_b32 s{LB}, s{S_W}, 10")
    a("s_waitcnt lgkmcnt(0)")
    a("s_cmp_lt_u32 s2, 192")
    a(f"s_cbranch_scc1 {pfx}_hasnonce")
    nonce_issue(a)
    a.label(f"{pfx}_hasnonce")
    mk_srd(a, SRD0, P_AX, 2048 * 1024)
    mk_srd(a, SRD1, P_WG, 512 * 2752)
    mk_srd(a, SRD3, P_WU, 512 * 2752)
    mk_srd(a, SRD2, P_WS, WS_BYTES)

    def xdma(j):
        slot = j % 2
        dma(a, vXo, SRD0, XS, j * 128, LB, XREG + slot * 16384)
        dma(a, vXo, SRD0, XS, j * 128 + 65536, LB, XREG + slot * 16384 + 8192)

    def wdma(u):
        slot = u % 3
        dma(a, vWo, SRD1, WS_, u * 32 * 2752, LB, WREG + slot * 16384)
        dma(a, vWo, SRD3, WS_, u * 32 * 2752, LB, WREG + slot * 16384 + 8192)

    def reads(u, s, buf):
        xs, wsl = ((u >> 1) % 2) * 16384, (u % 3) * 16384
        sx = 2 * (u & 1) + s
        for tt in range(2):
            a(f"ds_read_b128 {vr(FX[buf]+4*tt,4)}, v{vXa+sx} offset:{xs + tt*4096}")
        for F, mo in ((FG, 0), (FU, 8192)):
            a(f"ds_read_b64_tr_b16 {vr(F[buf],2)}, v{vWa} offset:{wsl + mo + s*4096}")
            a(f"ds_read_b64_tr_b16 {vr(F[buf]+2,2)}, v{vWa} offset:{wsl + mo + s*4096 + 1024}")

    stamp(a, 8)
    vm = VmTracker()
    xdma(0); vm.issue("X0", 2)
    wdma(0); vm.issue("W0", 2)
    wdma(1); vm.issue("W1", 2)
    xdma(1); vm.issue("X1", 2)
    wdma(2); vm.issue("W2", 2)
    x_frag_addrs(a, vXa, WR, 8, 9)
    w256_frag_addr(a, vWa, WC, WREG, 8, 9, 10)
    for i in range(64):
        a(f"v_mov_b32 v{AG+i}, 0")
    a(f"s_waitcnt vmcnt({vm.wait_for(['X0','W0'])})")
    a("s_barrier")
    stamp(a, 9)
    reads(0, 0, 0)
    buf = 0
    for u in range(16):
        for s in range(2):
            if s == 0:
                reads(u, 1, buf ^ 1)
                a("s_waitcnt lgkmcnt(6)")
            else:
                a("s_waitcnt lgkmcnt(0)")
                if u < 15:
                    a(f"s_waitcnt vmcnt({vm.wait_for([f'W{u+1}', f'X{(u+1)>>1}'])})")
                    a("s_barrier")
                    if u + 3 < 16:
                        wdma(u + 3); vm.issue(f"W{u+3}", 2)
                    if (u & 1) and (u >> 1) + 2 < 8:
                        xdma((u >> 1) + 2); vm.issue(f"X{(u>>1)+2}", 2)
                    reads(u + 1, 0, buf ^ 1)
            for tt in range(2):
                ag, au = vr(AG + 16 * tt, 16), vr(AU + 16 * tt, 16)
                a(f"v_mfma_f32_32x32x16_bf16 {ag}, {vr(FG[buf],4)}, {vr(FX[buf]+4*tt,4)}, {ag}")
                a(f"v_mfma_f32_32x32x16_bf16 {au}, {vr(FU[buf],4)}, {vr(FX[buf]+4*tt,4)}, {au}")
            buf ^= 1
    stamp(a, 10)
    a(f"s_lshl_b32 s62, s{RT}, 2")
    a(f"s_lshl_b32 s63, s{WR}, 1")
    a(f"s_add_u32 s62, s62, s63")
    a(f"s_mul_i32 s62, s62, {HSTEPS}")
    a(f"s_lshl_b32 s60, s{CT}, 3")
    a(f"s_lshl_b32 s63, s{WC}, 1")
    a(f"s_add_u32 s60, s60, s63")
    a(f"s_cmp_ge_u32 s60, 86")
    a(f"s_cselect_b32 s64, 0, 1.0")
    a(f"s_add_u32 s60, s60, s62")
    a(f"s_lshl_b32 s60, s60, 10")
    a(f"s_add_u32 s65, s60, 0x{HF:x}")
    a("v_lshlrev_b32 v1, 4, v0")
    a("s_nop 7")
    T = 8
    for tt in range(2):
        for hh in range(2):
            g0, u0 = AG + 16 * tt + 8 * hh, AU + 16 * tt + 8 * hh
            for i in range(8):
                a(f"v_mul_f32 v{T+i}, 0xbfb8aa3b, v{g0+i}")
            for i in range(8):
                a(f"v_exp_f32 v{T+i}, v{T+i}")
            for i in range(8):
                a(f"v_mul_f32 v{u0+i}, v{g0+i}, v{u0+i}")
            for i in range(8):
                a(f"v_add_f32 v{T+i}, 1.0, v{T+i}")
            for i in range(8):
                a(f"v_rcp_f32 v{T+i}, v{T+i}")
            for i in range(8):
                a(f"v_mul_f32 v{u0+i}, s64, v{u0+i}")
            for i in range(8):
                a(f"v_mul_f32 v{u0+i}, v{u0+i}, v{T+i}")
            d = 16 + 4 * (2 * tt + hh)
            for i in range(4):
                a(f"v_cvt_pk_bf16_f32 v{d+i}, v{u0+2*i}, v{u0+2*i+1}")
            a(f"s_add_u32 s63, s65, {tt*HSTEPS*1024 + hh*1024}")
            a(f"buffer_store_dwordx4 {vr(d,4)}, v1, s[{SRD2}:{SRD2+3}], s63 offen {ST}")
    a(f"s_lshl_b32 s64, s{RT}, 4")
    a(f"s_add_u32 s64, s64, s{CT}")
    publish(a, 64, F_H, SRD2)
    stamp(a, 11)


def role_g3(a, pfx):
    RT, CT, TR, TC, KHh = 38, 39, 56, 57, 58
    WS_, LB = 59, 61
    AH = 65
    vAo, vWo, vAa, vWa, vAa2, vWa2 = 1, 2, 3, 4, 6, 7
    FA = [8, 16]
    FW = [12, 20]
    ACCB = 32
    NS = 5
    task = 4
    a.c("---- G3: down projection ----")
    a(f"s_and_b32 s63, s{task}, 7")
    a(f"s_lshr_b32 s64, s{task}, 3")
    a(f"s_lshl_b32 s{RT}, s63, 2")
    a(f"s_and_b32 s60, s64, 3")
    a(f"s_add_u32 s{RT}, s{RT}, s60")
    a(f"s_lshr_b32 s{CT}, s64, 2")
    a(f"s_bfe_u32 s{TR}, s{S_W}, 0x10001")
    a(f"s_and_b32 s{TC}, s{S_W}, 1")
    a(f"s_lshr_b32 s{KHh}, s{S_W}, 2")
    a(f"v_lshlrev_b32 v{vAo}, 4, v0")
    a("v_bfe_u32 v8, v0, 2, 1")
    a("v_bfe_u32 v9, v0, 4, 1")
    a("v_xor_b32 v8, v8, v9")
    a("v_lshlrev_b32 v8, 6, v8")
    a("v_and_b32 v9, 3, v0")
    a("v_lshlrev_b32 v9, 4, v9")
    a("v_lshrrev_b32 v10, 3, v0")
    a("v_lshlrev_b32 v10, 10, v10")
    a(f"v_add3_u32 v{vWo}, v8, v9, v10")
    a(f"s_lshl_b32 s60, s{TR}, 12")
    a(f"s_lshl_b32 s63, s{KHh}, 11")
    a(f"s_add_u32 s60, s60, s63")
    a(f"v_add_u32 v{vAa}, s60, v{vAo}")
    a("v_lshrrev_b32 v8, 5, v0")
    a("v_lshlrev_b32 v8, 2, v8")
    a("v_bfe_u32 v9, v0, 2, 2")
    a("v_add_u32 v8, v8, v9")
    a("v_lshlrev_b32 v8, 7, v8")
    a("v_bfe_u32 v9, v0, 4, 1")
    a("v_lshlrev_b32 v9, 5, v9")
    a("v_and_b32 v10, 3, v0")
    a("v_lshlrev_b32 v10, 3, v10")
    a("v_add3_u32 v8, v8, v9, v10")
    a("v_bfe_u32 v9, v0, 3, 1")
    a("v_lshlrev_b32 v9, 6, v9")
    a("v_add_u32 v5, v8, v9")
    a(f"s_lshl_b32 s60, s{TC}, 6")
    a(f"v_xor_b32 v8, s60, v5")
    a(f"s_lshl_b32 s60, s{KHh}, 12")
    a(f"s_add_u32 s60, s60, 8192")
    a(f"v_add_u32 v{vWa}, s60, v8")
    a(f"v_add_u32 v{vAa2}, 0x10000, v{vAa}")
    a(f"v_add_u32 v{vWa2}, 0x10000, v{vWa}")
    a(f"s_lshl_b32 s60, s{RT}, 1")
    a(f"s_add_u32 s60, s60, s{KHh}")
    a(f"s_and_b32 s63, s{S_W}, 3")
    a(f"s_mul_i32 s{AH}, s60, {HSTEPS}")
    a(f"s_add_u32 s{AH}, s{AH}, s63")
    a(f"s_lshl_b32 s{AH}, s{AH}, 10")
    a(f"s_add_u32 s{AH}, s{AH}, 0x{HF:x}")
    a(f"s_lshl_b32 s{WS_}, s{S_W}, 13")
    a(f"s_lshl_b32 s60, s{CT}, 7")
    a(f"s_add_u32 s{WS_}, s{WS_}, s60")
    a(f"s_lshl_b32 s{LB}, s{S_W}, 10")
    mk_srd(a, SRD0, P_WD, 1376 * 1024)
    mk_srd(a, SRD1, P_WO, 512 * 1024)
    mk_srd(a, SRD2, P_WS, WS_BYTES)
    mk_srd(a, SRD3, P_OUT, 2048 * 1024)
    a(f"s_lshr_b32 s60, s{RT}, 1")
    a(f"s_lshl_b32 s60, s60, 11")
    a(f"s_add_u32 s60, s60, 0x{F_H:x}")
    a("v_lshlrev_b32 v10, 7, v0")
    a("v_add_u32 v10, s60, v10")
    wait_flags(a, 10, 11, SRD2)
    stamp(a, 5)
    vm = VmTracker()
    N = 22

    def sdma(n):
        slot = n % NS
        dma(a, vAo, SRD2, AH, n * 4096, LB, slot * 16384, mods=LD)
        dma(a, vWo, SRD0, WS_, n * 64 * 1024, LB, slot * 16384 + 8192)
        vm.issue(f"S{n}", 2)

    def reads(n, s, buf):
        slot = n % NS
        ra, rw, so = (vAa, vWa, slot * 16384) if slot < 4 else (vAa2, vWa2, 0)
        a(f"ds_read_b128 {vr(FA[buf],4)}, v{ra} offset:{so + s*1024}")
        a(f"ds_read_b64_tr_b16 {vr(FW[buf],2)}, v{rw} offset:{so + s*2048}")
        a(f"ds_read_b64_tr_b16 {vr(FW[buf]+2,2)}, v{rw} offset:{so + s*2048 + 1024}")

    for n in range(NS):
        sdma(n)
    for i in range(16):
        a(f"v_mov_b32 v{ACCB+i}, 0")
    a(f"s_waitcnt vmcnt({vm.wait_for(['S0'])})")
    a("s_barrier")
    reads(0, 0, 0)
    buf = 0
    for n in range(N):
        for s in range(2):
            if s == 0:
                reads(n, 1, buf ^ 1)
                a("s_waitcnt lgkmcnt(3)")
            else:
                a("s_waitcnt lgkmcnt(0)")
                if n < N - 1:
                    a(f"s_waitcnt vmcnt({vm.wait_for([f'S{n+1}'])})")
                    a("s_barrier")
                    if n + NS < N:
                        sdma(n + NS)
                    reads(n + 1, 0, buf ^ 1)
            a(f"v_mfma_f32_32x32x16_bf16 {vr(ACCB,16)}, {vr(FW[buf],4)}, {vr(FA[buf],4)}, {vr(ACCB,16)}")
            buf ^= 1
    a("v_and_b32 v8, 31, v0")
    a(f"s_lshl_b32 s60, s{TR}, 5")
    a("v_add_u32 v8, s60, v8")
    a("v_mul_u32_u24 v8, 272, v8")
    a("v_lshrrev_b32 v9, 5, v0")
    a("v_lshlrev_b32 v9, 4, v9")
    a(f"s_mul_i32 s60, s{KHh}, {64*272}")
    a(f"s_lshl_b32 s63, s{TC}, 7")
    a("s_add_u32 s60, s60, s63")
    a("v_add3_u32 v8, v8, v9, s60")
    a("s_barrier")
    a("s_nop 4")
    for q in range(4):
        a(f"ds_write_b128 v8, {vr(ACCB+4*q,4)} offset:{q*32}")
    a(f"s_lshl_b32 s60, s{S_W}, 3")
    a("v_lshrrev_b32 v24, 3, v0")
    a("v_add_u32 v24, s60, v24")
    a("v_and_b32 v25, 7, v0")
    a("v_mul_u32_u24 v26, 272, v24")
    a("v_lshlrev_b32 v27, 5, v25")
    a("v_add_u32 v26, v26, v27")
    a("s_waitcnt lgkmcnt(0)")
    a("s_barrier")
    B = 100
    a(f"ds_read_b128 v[{B}:{B+3}], v26")
    a(f"ds_read_b128 v[{B+4}:{B+7}], v26 offset:16")
    a(f"ds_read_b128 v[12:15], v26 offset:{64*272}")
    a(f"ds_read_b128 v[16:19], v26 offset:{64*272+16}")
    a("s_waitcnt lgkmcnt(0)")
    for i in range(8):
        a(f"v_add_f32 v{B+i}, v{B+i}, v{12+i}")
    a("s_barrier")
    stamp(a, 6)
    for i in range(8):
        dma(a, vWo, SRD1, WS_, i * 64 * 1024, LB, i * 8192)
    a(f"s_lshr_b32 s60, s{RT}, 2")
    a(f"s_lshl_b32 s60, s60, 12")
    a(f"s_add_u32 s60, s60, 0x{F_O:x}")
    a("v_lshlrev_b32 v10, 7, v0")
    a("v_add_u32 v10, s60, v10")
    a(f"s_lshl_b32 s60, s{RT}, 8")
    a(f"s_add_u32 s60, s60, 0x{F_G - 32*128:x}")
    a("v_lshlrev_b32 v11, 7, v0")
    a("v_add_u32 v11, s60, v11")
    a("v_cmp_gt_u32 vcc, 32, v0")
    a("s_nop 1")
    a("v_cndmask_b32 v10, v11, v10, vcc")
    wait_flags(a, 10, 34, SRD2)
    stamp(a, 7)
    OFr, ACCA = 32, 64
    a(f"s_and_b32 s62, s{S_W}, 1")
    a(f"s_lshr_b32 s63, s{S_W}, 1")
    a(f"s_lshl_b32 s60, s{RT}, 1")
    a("s_add_u32 s60, s60, s62")
    a("s_lshl_b32 s60, s60, 5")
    a("s_lshl_b32 s64, s63, 3")
    a("s_add_u32 s60, s60, s64")
    a("s_lshl_b32 s60, s60, 10")
    a(f"s_add_u32 s60, s60, 0x{OF:x}")
    for i in range(8):
        a(f"s_add_u32 s64, s60, {i*1024}")
        a(f"buffer_load_dwordx4 {vr(OFr+4*i,4)}, v{vAo}, s[{SRD2}:{SRD2+3}], s64 offen {LD}")
    a(f"s_lshl_b32 s60, s{RT}, 8")
    a(f"s_add_u32 s60, s60, 0x{GV:x}")
    a("v_lshlrev_b32 v11, 2, v24")
    a(f"buffer_load_dword v28, v11, s[{SRD2}:{SRD2+3}], s60 offen {LD}")
    a("s_lshl_b32 s64, s63, 14")
    a("v_add_u32 v4, s64, v5")
    a("v_xor_b32 v6, 64, v4")
    for i in range(32):
        a(f"v_mov_b32 v{ACCA+i}, 0")
    a("s_waitcnt vmcnt(9)")
    a("s_barrier")
    WF = [8, 12, 16, 20]

    def wreads(i, buf):
        for tc, va in ((0, 4), (1, 6)):
            d = WF[2 * buf + tc]
            a(f"ds_read_b64_tr_b16 {vr(d,2)}, v{va} offset:{i*2048}")
            a(f"ds_read_b64_tr_b16 {vr(d+2,2)}, v{va} offset:{i*2048 + 1024}")
    wreads(0, 0)
    for i in range(8):
        if i < 7:
            wreads(i + 1, (i + 1) & 1)
            a(f"s_waitcnt vmcnt({8 - i}) lgkmcnt(4)")
        else:
            a(f"s_waitcnt vmcnt(1) lgkmcnt(0)")
        for tc in range(2):
            acc = vr(ACCA + 16 * tc, 16)
            a(f"v_mfma_f32_32x32x16_bf16 {acc}, {vr(WF[2*(i&1)+tc],4)}, {vr(OFr+4*i,4)}, {acc}")
    a("v_and_b32 v8, 31, v0")
    a("s_lshl_b32 s60, s62, 5")
    a("v_add_u32 v8, s60, v8")
    a("v_mul_u32_u24 v8, 272, v8")
    a("v_lshrrev_b32 v9, 5, v0")
    a("v_lshlrev_b32 v9, 4, v9")
    a(f"s_mul_i32 s60, s63, {64*272}")
    a("v_add3_u32 v8, v8, v9, s60")
    a("s_barrier")
    a("s_nop 4")
    for tc in range(2):
        for q in range(4):
            a(f"ds_write_b128 v8, {vr(ACCA+16*tc+4*q,4)} offset:{tc*128 + q*32}")
    a("v_lshlrev_b32 v9, 10, v24")
    a("v_lshlrev_b32 v10, 4, v25")
    a("v_add_u32 v9, v9, v10")
    a(f"s_lshl_b32 s60, s{RT}, 16")
    a(f"s_lshl_b32 s63, s{CT}, 7")
    a("s_add_u32 s60, s60, s63")
    a("s_waitcnt lgkmcnt(0)")
    a("s_barrier")
    for p in range(4):
        a(f"ds_read_b128 v[{32+8*p}:{35+8*p}], v26 offset:{p*64*272}")
        a(f"ds_read_b128 v[{36+8*p}:{39+8*p}], v26 offset:{p*64*272+16}")
    a("s_waitcnt vmcnt(0)")
    a("v_sub_f32 v29, 1.0, v28")
    for i in range(8):
        a(f"v_mul_f32 v{B+i}, v29, v{B+i}")
    a("s_waitcnt lgkmcnt(0)")
    for i in range(8):
        a(f"v_add_f32 v{32+i}, v{32+i}, v{40+i}")
        a(f"v_add_f32 v{48+i}, v{48+i}, v{56+i}")
    for i in range(8):
        a(f"v_add_f32 v{32+i}, v{32+i}, v{48+i}")
    for i in range(8):
        a(f"v_fmac_f32 v{B+i}, v28, v{32+i}")
    for i in range(4):
        a(f"v_cvt_pk_bf16_f32 v{12+i}, v{B+2*i}, v{B+2*i+1}")
    a(f"buffer_store_dwordx4 v[12:15], v9, s[{SRD3}:{SRD3+3}], s60 offen")


def role_attn(a, pfx, end_label):
    H, QB, QG, KH, STG = 38, 39, 56, 57, 58
    GS, LB = 59, 61
    MSK = 64
    vKa, vVa, vDo = 1, 2, 3
    SA, SB, OA, OB = 16, 32, 48, 64
    QA, QBf = 80, 84
    KB = [88, 92]
    VB = [96, 104]
    IDX = 112
    task = 4
    a.c("---- attention ----")
    a(f"s_and_b32 s62, s{task}, 7")
    a(f"s_lshr_b32 s63, s{task}, 3")
    a(f"s_lshl_b32 s{H}, s62, 2")
    a(f"s_lshr_b32 s60, s63, 3")
    a(f"s_add_u32 s{H}, s{H}, s60")
    a(f"s_and_b32 s{QB}, s63, 7")
    a(f"s_and_b32 s{QG}, s{S_W}, 3")
    a(f"s_lshr_b32 s{KH}, s{S_W}, 2")
    a(f"s_lshl_b32 s{GS}, s{H}, 16")
    a(f"s_lshl_b32 s60, s{KH}, 15")
    a(f"s_add_u32 s{GS}, s{GS}, s60")
    a(f"s_lshl_b32 s60, s{QG}, 10")
    a(f"s_add_u32 s{GS}, s{GS}, s60")
    a(f"s_lshl_b32 s{LB}, s{KH}, 13")
    a(f"s_add_u32 s{LB}, s{LB}, s60")
    a(f"v_lshlrev_b32 v{vDo}, 4, v0")
    a(f"s_lshl_b32 s60, s{KH}, 13")
    a(f"v_add_u32 v{vKa}, s60, v{vDo}")
    a(f"v_lshrrev_b32 v4, 5, v0")
    a(f"v_lshlrev_b32 v4, 8, v4")
    a(f"v_and_b32 v5, 15, v0")
    a(f"v_lshlrev_b32 v5, 4, v5")
    a(f"s_add_u32 s60, s60, 4096")
    a(f"v_add3_u32 v{vVa}, v4, v5, s60")
    a(f"s_mov_b32 s{MSK}, 0x0000ffff")
    a(f"s_mov_b32 s{MSK+1}, 0x0000ffff")
    mk_srd(a, SRD2, P_WS, WS_BYTES)
    for i in range(16):
        a(f"v_mov_b32 v{OA+i}, 0")
        a(f"v_mov_b32 v{OB+i}, 0")
        a(f"v_mov_b32 v{SB+i}, 0")
    a(f"v_mov_b32 v{IDX}, 0xdddddddd")
    a("v_and_b32 v4, 16, v0")
    a("v_cmp_ne_u32 vcc, 0, v4")
    a("v_mov_b32 v5, 0x3f803f80")
    a("s_nop 1")
    for i in range(16):
        a(f"v_cndmask_b32 v{VB[0]+i}, 0, v5, vcc")
    a(f"s_lshr_b32 s60, s{H}, 3")
    a("v_lshrrev_b32 v4, 4, v0")
    a("v_lshlrev_b32 v4, 2, v4")
    a("v_add_u32 v4, 4, v4")
    a("v_cmp_gt_u32 vcc, 32, v0")
    a("s_nop 1")
    a("v_cndmask_b32 v4, 0, v4, vcc")
    a("v_add_u32 v4, s60, v4")
    a("v_and_b32 v5, 15, v0")
    a(f"s_lshl_b32 s62, s{QB}, 1")
    a("v_add_u32 v6, s62, v5")
    a("v_cndmask_b32 v5, v6, v5, vcc")
    a("v_lshl_add_u32 v4, v4, 4, v5")
    a("v_lshlrev_b32 v4, 7, v4")
    a(f"v_add_u32 v4, 0x{F_QKV:x}, v4")
    stamp(a, 1)
    wait_flags(a, 4, 34, SRD2)
    stamp(a, 2)
    if OPT.get("prio"):
        a(f"s_setprio {OPT['prio']}")
    a(f"s_lshl_b32 s60, s{H}, 6")
    a(f"s_lshl_b32 s62, s{QB}, 3")
    a(f"s_add_u32 s60, s60, s62")
    a(f"s_lshl_b32 s62, s{QG}, 1")
    a(f"s_add_u32 s60, s60, s62")
    a(f"s_lshl_b32 s60, s60, 10")
    a(f"s_add_u32 s62, s60, 1024")
    for st in range(1):
        dma(a, vDo, SRD2, GS, KF + st * 4096, LB, st * 16384, tmp=63, mods=LD)
        dma(a, vDo, SRD2, GS, VF + st * 4096, LB, st * 16384 + 4096, tmp=63, mods=LD)
    a(f"buffer_load_dwordx4 {vr(QA,4)}, v{vDo}, s[{SRD2}:{SRD2+3}], s60 offen {LD}")
    a(f"buffer_load_dwordx4 {vr(QBf,4)}, v{vDo}, s[{SRD2}:{SRD2+3}], s62 offen {LD}")
    for st in range(1, 3):
        dma(a, vDo, SRD2, GS, KF + st * 4096, LB, st * 16384, tmp=63, mods=LD)
        dma(a, vDo, SRD2, GS, VF + st * 4096, LB, st * 16384 + 4096, tmp=63, mods=LD)
    NXT, SLOT = 66, 67
    a(f"s_add_u32 s{NXT}, s{GS}, {3*4096}")
    a(f"s_mov_b32 s{SLOT}, {3*16384}")
    a(f"s_mov_b32 s{STG}, 0")
    a("s_waitcnt vmcnt(4)")
    a("s_barrier")
    stamp(a, 3)

    def kread(buf, off):
        a(f"ds_read_b128 {vr(KB[buf],4)}, v{vKa} offset:{off}")

    def vread(buf, off):
        a(f"s_mov_b64 exec, s[{MSK}:{MSK+1}]")
        a(f"ds_read_b128 {vr(VB[buf],4)}, v{vVa} offset:{off}")
        a(f"ds_read_b128 {vr(VB[buf]+4,4)}, v{vVa} offset:{off+512}")
        a("s_mov_b64 exec, -1")

    kread(0, 0)
    vread(0, 0)
    a("s_waitcnt lgkmcnt(0)")
    a(f"v_mfma_f32_32x32x16_bf16 {vr(SA,16)}, {vr(KB[0],4)}, {vr(QA,4)}, 0")
    a("s_nop 7")
    a("s_nop 7")
    Lloop = f"{pfx}_loop"
    a(".p2align 6")
    a.label(Lloop)
    for b in range(4):
        cur, nxt = b & 1, (b & 1) ^ 1
        exA = [f"v_exp_f32 v{SA+i}, v{SA+i}" for i in range(16)]
        exB = [f"v_exp_f32 v{SB+i}, v{SB+i}" for i in range(16)]
        if b == 3:
            Lt, Lj = a.uid(pfx + "_t"), a.uid(pfx + "_j")
            a(f"s_cmp_lt_u32 s{STG}, 5")
            a(f"s_cbranch_scc0 {Lt}")
            a("s_waitcnt vmcnt(2)")
            a("s_barrier")
            a(f"s_add_u32 m0, s{LB}, s{SLOT}")
            a(f"s_add_u32 s60, s{NXT}, 0x{KF:x}")
            a(f"buffer_load_dwordx4 v{vDo}, s[{SRD2}:{SRD2+3}], s60 offen {LD} lds")
            a(f"s_add_u32 m0, m0, 4096")
            a(f"s_add_u32 s60, s{NXT}, 0x{VF:x}")
            a(f"buffer_load_dwordx4 v{vDo}, s[{SRD2}:{SRD2+3}], s60 offen {LD} lds")
            a(f"s_add_u32 s{NXT}, s{NXT}, 4096")
            a(f"s_add_u32 s{SLOT}, s{SLOT}, 16384")
            a(f"s_and_b32 s{SLOT}, s{SLOT}, 0xffff")
            a(f"s_branch {Lj}")
            a.label(Lt)
            a("s_waitcnt vmcnt(0)")
            a("s_barrier")
            a.label(Lj)
            a(f"v_add_u32 v{vKa}, 16384, v{vKa}")
            a(f"v_add_u32 v{vVa}, 16384, v{vVa}")
            a(f"v_and_b32 v{vKa}, 0xffff, v{vKa}")
            a(f"v_and_b32 v{vVa}, 0xffff, v{vVa}")
            noff = 0
        else:
            noff = (b + 1) * 1024
        a(exA[0])
        kread(nxt, noff)
        a(f"v_smfmac_f32_32x32x32_bf16 {vr(OB,16)}, {vr(VB[nxt],4)}, {vr(SB,8)}, v{IDX}")
        for e in exA[1:4]:
            a(e)
        a(f"v_smfmac_f32_32x32x32_bf16 {vr(OB,16)}, {vr(VB[nxt]+4,4)}, {vr(SB+8,8)}, v{IDX}")
        for e in exA[4:7]:
            a(e)
        a(f"v_mfma_f32_32x32x16_bf16 {vr(SB,16)}, {vr(KB[cur],4)}, {vr(QBf,4)}, 0")
        vread(nxt, noff)
        for e in exA[7:16]:
            a(e)
        a("s_waitcnt lgkmcnt(2)")
        a(exB[0])
        a(f"v_smfmac_f32_32x32x32_bf16 {vr(OA,16)}, {vr(VB[cur],4)}, {vr(SA,8)}, v{IDX}")
        for e in exB[1:4]:
            a(e)
        a(f"v_smfmac_f32_32x32x32_bf16 {vr(OA,16)}, {vr(VB[cur]+4,4)}, {vr(SA+8,8)}, v{IDX}")
        for e in exB[4:7]:
            a(e)
        a(f"v_mfma_f32_32x32x16_bf16 {vr(SA,16)}, {vr(KB[nxt],4)}, {vr(QA,4)}, 0")
        for e in exB[7:16]:
            a(e)
    a(f"s_add_u32 s{STG}, s{STG}, 1")
    a(f"s_cmp_lt_u32 s{STG}, 8")
    a(f"s_cbranch_scc1 {Lloop}")
    a(f"v_smfmac_f32_32x32x32_bf16 {vr(OB,16)}, {vr(VB[1],4)}, {vr(SB,8)}, v{IDX}")
    a(f"v_smfmac_f32_32x32x32_bf16 {vr(OB,16)}, {vr(VB[1]+4,4)}, {vr(SB+8,8)}, v{IDX}")
    stamp(a, 4)
    a("s_waitcnt lgkmcnt(0)")
    a(f"s_mul_i32 s60, s{QG}, {2*64*48}")
    a("v_mul_u32_u24 v4, 48, v0")
    a("v_add_u32 v4, s60, v4")
    a("s_barrier")
    a("s_nop 7")
    a("s_nop 3")
    Lw, Lp = f"{pfx}_kh0", f"{pfx}_pub"
    a(f"s_cmp_eq_u32 s{KH}, 0")
    a(f"s_cbranch_scc1 {Lw}")
    for t, O in enumerate((OA, OB)):
        for q in range(3):
            a(f"ds_write_b128 v4, {vr(O+4*q,4)} offset:{t*3072 + q*16}")
    a("s_waitcnt lgkmcnt(0)")
    a("s_barrier")
    a(f"s_branch {Lp}")
    a.label(Lw)
    a(f"s_lshl_b32 s60, s{QB}, 3")
    a(f"s_lshl_b32 s62, s{QG}, 1")
    a(f"s_add_u32 s60, s60, s62")
    a(f"s_lshl_b32 s60, s60, 5")
    a(f"s_add_u32 s60, s60, s{H}")
    a(f"s_lshl_b32 s60, s60, 10")
    a(f"s_add_u32 s60, s60, 0x{OF:x}")
    a("s_barrier")
    for t in range(2):
        for q in range(3):
            a(f"ds_read_b128 {vr(80+12*t+4*q,4)}, v4 offset:{t*3072 + q*16}")
    a("s_waitcnt lgkmcnt(0)")
    for t, O in enumerate((OA, OB)):
        for i in range(9):
            a(f"v_add_f32 v{O+i}, v{O+i}, v{80+12*t+i}")
    for t, O in enumerate((OA, OB)):
        a(f"v_rcp_f32 v{O+8}, v{O+8}")
    a("s_nop 0")
    for t, O in enumerate((OA, OB)):
        for i in range(8):
            a(f"v_mul_f32 v{O+i}, v{O+i}, v{O+8}")
        for i in range(4):
            a(f"v_cvt_pk_bf16_f32 v{80+4*t+i}, v{O+2*i}, v{O+2*i+1}")
        a(f"s_add_u32 s62, s60, {t*32*1024}")
        a(f"buffer_store_dwordx4 {vr(80+4*t,4)}, v{vDo}, s[{SRD2}:{SRD2+3}], s62 offen {ST}")
    a.label(Lp)
    a(f"s_lshl_b32 s64, s{QB}, 5")
    a(f"s_add_u32 s64, s64, s{H}")
    publish(a, 64, F_O, SRD2)
    stamp(a, 5)
    a(f"s_or_b32 s60, s{task}, s{S_W}")
    a("s_cmp_lg_u32 s60, 0")
    a(f"s_cbranch_scc1 {end_label}")
    groups = [(F_O + i * 64 * 128, 64) for i in range(4)] + [(F_QKV + i * 64 * 128, 64) for i in range(3)]
    Lep = f"{pfx}_ep"
    a("v_lshlrev_b32 v4, 7, v0")
    a("s_mov_b32 s66, 0")
    a.label(Lep)
    for gi, (base, n) in enumerate(groups):
        a(f"s_mov_b32 s60, 0x{base:x}")
        a(f"buffer_load_dword v{8+gi}, v4, s[{SRD2}:{SRD2+3}], s60 offen sc0 sc1")
    for gi in range(4):
        a(f"s_mov_b32 s60, 0x{F_H + gi*64*128:x}")
        a(f"buffer_load_dword v{16+gi}, v4, s[{SRD2}:{SRD2+3}], s60 offen sc0 sc1")
    a("s_waitcnt vmcnt(0)")
    a("s_mov_b64 s[62:63], -1")
    for gi in range(len(groups)):
        a(f"v_cmp_eq_u32 vcc, s{S_NONCE}, v{8+gi}")
        a("s_and_b64 s[62:63], s[62:63], vcc")
    a("s_mov_b32 s64, 0xf800f800")
    a("s_mov_b32 s65, 0xf800f800")
    for gi in range(4):
        a(f"v_cmp_eq_u32 vcc, s{S_NONCE}, v{16+gi}")
        a("s_or_b64 vcc, vcc, s[64:65]")
        a("s_and_b64 s[62:63], s[62:63], vcc")
    a("s_cmp_eq_u64 s[62:63], -1")
    a(f"s_cbranch_scc1 {Lep}_ok")
    a("s_add_u32 s66, s66, 1")
    a(f"s_cmp_lt_u32 s66, {roles.SPIN_MAX}")
    a(f"s_cbranch_scc0 {Lep}_ok")
    a("s_sleep 4")
    a(f"s_branch {Lep}")
    a.label(Lep + "_ok")
    a(f"v_mov_b32 v8, s{S_NONCE}")
    a("v_mov_b32 v9, 0")
    a(f"s_mov_b32 s60, 0x{EPOCH:x}")
    a("s_mov_b64 exec, 1")
    a(f"buffer_store_dword v8, v9, s[{SRD2}:{SRD2+3}], s60 offen sc0 sc1")
    a(f"s_branch {end_label}")


def build():
    HDR = open("cdna_kernels/" + NAME + ".s.ref").read().split("; Override launch")[0]
    out = [HDR.rstrip("\n")]
    out.append(f"; @launch grid=(512,1,1) block=(512,1,1) lds=81920")
    out.append('.amdgcn_target "amdgcn-amd-amdhsa--gfx950"')
    a = Asm()
    a("s_cmp_ge_u32 s2, 512")
    a("s_cbranch_scc1 L_exit")
    if OPT.get("dbgspan"):
        a("s_memrealtime s[96:97]")
    roles.common_prologue(a)
    a("s_cmp_ge_u32 s2, 256")
    a("s_cbranch_scc1 L_attn")
    a("s_cmp_ge_u32 s2, 192")
    a("s_cbranch_scc1 L_f_g2first")
    a("s_mov_b32 s4, s2")
    role_g1(a, "g1")
    a("s_cmp_lt_u32 s2, 112")
    a("s_cbranch_scc1 L_f_g2second")
    a("s_cmp_ge_u32 s2, 176")
    a("s_cbranch_scc1 L_f_g3")
    a("s_sub_u32 s4, s2, 112")
    role_gate(a, "gt")
    a("s_branch L_f_g3")
    a.label("L_f_g2second")
    a("s_lshr_b32 s4, s2, 3")
    a("s_add_u32 s4, s4, 8")
    a("s_branch L_f_g2")
    a.label("L_f_g2first")
    a("s_sub_u32 s4, s2, 192")
    a("s_lshr_b32 s4, s4, 3")
    a.label("L_f_g2")
    role_g2(a, "g2")
    a.label("L_f_g3")
    a("s_mov_b32 s4, s2")
    role_g3(a, "g3")
    a("s_branch L_end")
    a.label("L_attn")
    a("s_waitcnt lgkmcnt(0)")
    nonce_issue(a)
    a("s_sub_u32 s4, s2, 256")
    role_attn(a, "at", "L_end")
    a.label("L_end")
    if OPT.get("dbgspan"):
        a("s_waitcnt vmcnt(0)")
        a("s_memrealtime s[98:99]")
        a("s_waitcnt lgkmcnt(0)")
        a("s_cmp_lg_u32 s3, 0")
        a("s_cbranch_scc1 L_exit")
        mk_srd(a, 92, P_DBG, 256)
        a("s_not_b32 s100, s96")
        a("s_mov_b64 exec, 1")
        a("v_mov_b32 v1, 0")
        a("v_mov_b32 v2, s100")
        a("buffer_atomic_umax v2, v1, s[92:95], 0 offen")
        a("v_mov_b32 v3, s98")
        a("buffer_atomic_umax v3, v1, s[92:95], 0 offen offset:4")
        a("v_mov_b32 v4, s96")
        a("buffer_atomic_umax v4, v1, s[92:95], 0 offen offset:12")
        a("s_waitcnt vmcnt(0)")
    stamp_flush(a, 0)
    a.label("L_exit")
    a("s_endpgm")
    out.append(kernel_header(NAME + "_kernel") + a.text())
    out.append(KD.format(name=NAME + "_kernel", vgpr=128, sgpr=102 if OPT.get("dbgspan") else 96, accum=128))
    return "\n".join(out)


if __name__ == "__main__":
    if "--prof" in sys.argv:
        roles.PROF = True
    for arg in sys.argv:
        if arg.startswith("--opt="):
            for kv in arg[6:].split(","):
                k, v = kv.split("=")
                OPT[k] = int(v)
    path = sys.argv[1] if len(sys.argv) > 1 and not sys.argv[1].startswith("--") else "cdna_kernels/" + NAME + ".s"
    open(path, "w").write(build())
    print("wrote", path)
```

```python
from asmlib import *

GAP = 4096
QF = GAP
KF = QF + (2 << 20) + GAP
VF = KF + (2 << 20) + GAP
OF = VF + (2 << 20) + GAP
GV = OF + (2 << 20) + GAP
HF = GV + 8192 + GAP
HSTEPS = 88
HSTRIDE = 89
WS_BYTES = 16 << 20
FLG = 14 << 20
F_QKV = FLG
F_H = FLG + 192 * 128
F_O = F_H + 256 * 128
F_G = F_O + 256 * 128
EPOCH = F_G + 64 * 128
S_NONCE = 5
FUSED = False
ST_MODS = ""
LD_MODS = ""
SPIN_MAX = 1 << 15
QSCALE = 0x3EB8AA3B

S_W = 3
P_AX, P_WQKV, P_WO, P_BX, P_WG, P_WU, P_WD, P_GW = 16, 18, 20, 22, 24, 26, 28, 30
P_OUT, P_DBG, P_WS = 32, 34, 36
SRD0, SRD1, SRD2, SRD3 = 40, 44, 48, 52


PROF = False
PROF_OFF = 20 << 20
NSTAMP = 16
def stamp(a, i):
    if PROF:
        a("s_memtime s[88:89]")
        a("s_waitcnt lgkmcnt(0)")
        a(f"s_mov_b32 s{70+i}, s88")

def stamp_flush(a, kidx):
    if PROF:
        a("s_memtime s[86:87]")
        a("s_memrealtime s[88:89]")
        a("s_waitcnt vmcnt(0) lgkmcnt(0)")
        a("s_mov_b64 exec, 1")
        a("s_lshl_b32 s90, s2, 4")
        a("s_add_u32 s90, s90, s3")
        a("s_lshl_b32 s90, s90, 7")
        a(f"s_add_u32 s90, s90, 0x{PROF_OFF + kidx*(1<<20):x}")
        mk_srd(a, 92, P_WS, 32 << 20)
        for i in range(NSTAMP):
            a(f"v_mov_b32 v{8+i}, s{70+i}")
        a("v_mov_b32 v24, s86")
        a("v_mov_b32 v25, s88")
        a("v_mov_b32 v26, s68")
        a("v_mov_b32 v27, s69")
        a("v_mov_b32 v1, 0")
        for q in range(5):
            a(f"buffer_store_dwordx4 v[{8+4*q}:{11+4*q}], v1, s[92:95], s90 offen offset:{16*q}")

def common_prologue(a):
    if PROF:
        a("s_memrealtime s[68:69]")
        a("s_memtime s[70:71]")
        a("s_waitcnt lgkmcnt(0)")
        for i in range(1, NSTAMP):
            a(f"s_mov_b32 s{70+i}, 0")
    a("s_load_dwordx16 s[16:31], s[0:1], 0")
    a("s_load_dwordx4 s[32:35], s[0:1], 64")
    a("s_load_dwordx2 s[36:37], s[0:1], 80")
    a("v_lshrrev_b32 v1, 6, v0")
    a("v_and_b32 v0, 63, v0")
    a("s_nop 0")
    a("v_readfirstlane_b32 s3, v1")


S_EPOCH = 91
def nonce_issue(a):
    a(f"s_add_u32 s6, s{P_WS}, 0x{EPOCH:x}")
    a(f"s_addc_u32 s7, s{P_WS+1}, 0")
    a(f"s_load_dword s{S_EPOCH}, s[6:7], 0")


def nonce_get(a):
    a("s_waitcnt lgkmcnt(0)")
    a(f"s_add_u32 s{S_NONCE}, s{S_EPOCH}, 1")


load_nonce = None


def publish(a, idx_sreg, base, srd, vm=0):
    L = a.uid("pub")
    nonce_get(a)
    a(f"s_waitcnt vmcnt({vm})")
    a("s_barrier")
    a(f"s_cmp_lg_u32 s{S_W}, 0")
    a(f"s_cbranch_scc1 {L}")
    a(f"s_lshl_b32 s60, s{idx_sreg}, 7")
    a(f"s_add_u32 s60, s60, 0x{base:x}")
    a(f"v_mov_b32 v8, s{S_NONCE}")
    a("v_mov_b32 v9, 0")
    a("s_mov_b64 exec, 1")
    a(f"buffer_store_dword v8, v9, s[{srd}:{srd+3}], s60 offen sc0 sc1")
    a("s_mov_b64 exec, -1")
    a.label(L)


def wait_flags(a, vaddr, nlanes, srd, sleep=1, two_stage=False):
    L, L1, L2, Ld = a.uid("wf"), a.uid("wf1"), a.uid("wf2"), a.uid("wfd")
    mask = (1 << nlanes) - 1
    nonce_get(a)
    a(f"s_cmp_lg_u32 s{S_W}, 0")
    a(f"s_cbranch_scc1 {Ld}")
    a("s_mov_b32 s60, 0")
    a(f"s_mov_b32 s62, 0x{mask & 0xffffffff:x}")
    a(f"s_mov_b32 s63, 0x{mask >> 32:x}")
    if two_stage:
        a("s_mov_b64 exec, 1")
        a.label(L1)
        a(f"buffer_load_dword v8, v{vaddr}, s[{srd}:{srd+3}], 0 offen sc0 sc1")
        a("s_waitcnt vmcnt(0)")
        a(f"v_cmp_eq_u32 vcc, s{S_NONCE}, v8")
        a("s_cmp_lg_u64 vcc, 0")
        a(f"s_cbranch_scc1 {L2}")
        a("s_add_u32 s60, s60, 1")
        a(f"s_cmp_lt_u32 s60, {SPIN_MAX}")
        a(f"s_cbranch_scc0 {L2}")
        a("s_sleep 8")
        a(f"s_branch {L1}")
        a.label(L2)
    a("s_mov_b64 exec, s[62:63]")
    a.label(L)
    a(f"buffer_load_dword v8, v{vaddr}, s[{srd}:{srd+3}], 0 offen sc0 sc1")
    a("s_waitcnt vmcnt(0)")
    a(f"v_cmp_eq_u32 vcc, s{S_NONCE}, v8")
    a("s_cmp_eq_u64 vcc, s[62:63]")
    a(f"s_cbranch_scc1 {Ld}_x")
    a("s_add_u32 s60, s60, 1")
    a(f"s_cmp_lt_u32 s60, {SPIN_MAX}")
    a(f"s_cbranch_scc0 {Ld}_x")
    if sleep:
        a(f"s_sleep {sleep}")
    a(f"s_branch {L}")
    a.label(Ld + "_x")
    a("s_mov_b64 exec, -1")
    a.label(Ld)
    a("s_barrier")


def mk_srd(a, srd, ptr, nbytes, off=0):
    if off:
        a(f"s_add_u32 s{srd}, s{ptr}, 0x{off:x}")
        a(f"s_addc_u32 s{srd+1}, s{ptr+1}, 0")
    else:
        a(f"s_mov_b32 s{srd}, s{ptr}")
        a(f"s_mov_b32 s{srd+1}, s{ptr+1}")
    a(f"s_mov_b32 s{srd+2}, 0x{nbytes:x}")
    a(f"s_mov_b32 s{srd+3}, 0x20000")


def dma(a, voff, srd, sbase, soff_imm, lds_sbase, lds_imm, tmp=60, mods=""):
    a(f"s_add_u32 m0, s{lds_sbase}, 0x{lds_imm:x}")
    a(f"s_add_u32 s{tmp}, s{sbase}, 0x{soff_imm:x}")
    a(f"buffer_load_dwordx4 v{voff}, s[{srd}:{srd+3}], s{tmp} offen {mods} lds".replace("  ", " "))


def x_dma_voffset(a, vdst, t0, t1):
    a(f"s_and_b32 s60, s{S_W}, 1")
    a(f"s_lshl_b32 s60, s60, 2")
    a(f"v_lshrrev_b32 v{t0}, 4, v0")
    a(f"v_add_u32 v{t0}, s60, v{t0}")
    a(f"v_and_b32 v{t1}, 7, v0")
    a(f"v_xor_b32 v{t0}, v{t0}, v{t1}")
    a(f"v_lshlrev_b32 v{t0}, 4, v{t0}")
    a(f"v_lshrrev_b32 v{t1}, 3, v0")
    a(f"v_lshlrev_b32 v{t1}, 10, v{t1}")
    a(f"v_add_u32 v{vdst}, v{t0}, v{t1}")


def w256_dma_voffset(a, vdst, rowstride, t0, t1):
    a(f"v_lshrrev_b32 v{t0}, 4, v0")
    a(f"v_bfe_u32 v{t1}, v0, 2, 2")
    a(f"v_xor_b32 v{t1}, v{t1}, v{t0}")
    a(f"v_lshlrev_b32 v{t1}, 6, v{t1}")
    a(f"v_mul_u32_u24 v{t0}, {rowstride}, v{t0}")
    a(f"v_add_u32 v{t0}, v{t0}, v{t1}")
    a(f"v_and_b32 v{t1}, 3, v0")
    a(f"v_lshlrev_b32 v{t1}, 4, v{t1}")
    a(f"v_add_u32 v{vdst}, v{t0}, v{t1}")


def x_frag_addrs(a, vbase, wr_sreg, t0, t1):
    a(f"v_and_b32 v{t0}, 31, v0")
    a(f"v_bfe_u32 v{t1}, v0, 1, 3")
    a(f"v_lshrrev_b32 v{vbase}, 5, v0")
    a(f"v_xor_b32 v{t1}, v{t1}, v{vbase}")
    a(f"v_lshlrev_b32 v{t1}, 4, v{t1}")
    a(f"v_lshlrev_b32 v{t0}, 7, v{t0}")
    a(f"v_add_u32 v{t0}, v{t0}, v{t1}")
    a(f"s_lshl_b32 s60, s{wr_sreg}, 13")
    a(f"v_add_u32 v{vbase}, s60, v{t0}")
    for s in range(1, 4):
        a(f"v_xor_b32 v{vbase+s}, {32*s}, v{vbase}")


def w256_frag_addr(a, vdst, wc_sreg, region, t0, t1, t2):
    a(f"v_bfe_u32 v{t0}, v0, 2, 2")
    a(f"v_lshrrev_b32 v{t1}, 5, v0")
    a(f"v_lshlrev_b32 v{t1}, 3, v{t1}")
    a(f"v_add_u32 v{t1}, v{t1}, v{t0}")
    a(f"v_lshlrev_b32 v{t1}, 8, v{t1}")
    a(f"v_xor_b32 v{t0}, s{wc_sreg}, v{t0}")
    a(f"v_lshlrev_b32 v{t0}, 6, v{t0}")
    a(f"v_add_u32 v{t1}, v{t1}, v{t0}")
    a(f"v_bfe_u32 v{t0}, v0, 4, 1")
    a(f"v_lshlrev_b32 v{t0}, 5, v{t0}")
    a(f"v_and_b32 v{t2}, 3, v0")
    a(f"v_lshlrev_b32 v{t2}, 3, v{t2}")
    a(f"v_add3_u32 v{t1}, v{t1}, v{t0}, v{t2}")
    a(f"v_add_u32 v{vdst}, 0x{region:x}, v{t1}")


def role_g1(a, task, pfx, end_label):
    RT, CT, WR, WC = 38, 39, 56, 57
    XS, WS_, LB = 58, 59, 61
    vXo, vWo, vXa, vWa = 1, 2, 3, 7
    FX = [8, 20]
    FW = [16, 28]
    ACC = 32
    XREG, WREG = 0, 49152
    a.c("---- G1: QKV tile ----")
    a(f"s_and_b32 s62, s{task}, 7")
    a(f"s_lshr_b32 s63, s{task}, 3")
    a(f"s_lshr_b32 s{RT}, s62, 1")
    a(f"s_lshl_b32 s{RT}, s{RT}, 2")
    a(f"s_and_b32 s60, s63, 3")
    a(f"s_add_u32 s{RT}, s{RT}, s60")
    a(f"s_and_b32 s{CT}, s62, 1")
    a(f"s_mul_i32 s{CT}, s{CT}, 6")
    a(f"s_lshr_b32 s60, s63, 2")
    a(f"s_add_u32 s{CT}, s{CT}, s60")
    a(f"s_lshr_b32 s{WR}, s{S_W}, 2")
    a(f"s_and_b32 s{WC}, s{S_W}, 3")
    x_dma_voffset(a, vXo, 8, 9)
    w256_dma_voffset(a, vWo, 3072, 8, 9)
    x_frag_addrs(a, vXa, WR, 8, 9)
    w256_frag_addr(a, vWa, WC, WREG, 8, 9, 10)
    a(f"s_lshl_b32 s{XS}, s{RT}, 7")
    a(f"s_lshl_b32 s60, s{S_W}, 3")
    a(f"s_add_u32 s{XS}, s{XS}, s60")
    a(f"s_lshl_b32 s{XS}, s{XS}, 10")
    a(f"s_mul_i32 s{WS_}, s{S_W}, {4*3072}")
    a(f"s_lshl_b32 s60, s{CT}, 8")
    a(f"s_add_u32 s{WS_}, s{WS_}, s60")
    a(f"s_lshl_b32 s{LB}, s{S_W}, 10")
    a("s_waitcnt lgkmcnt(0)")
    mk_srd(a, SRD0, P_AX, 2048 * 1024)
    mk_srd(a, SRD1, P_WQKV, 512 * 3072)
    mk_srd(a, SRD2, P_WS, WS_BYTES)

    def xdma(j):
        slot = j % 3
        dma(a, vXo, SRD0, XS, j * 128, LB, XREG + slot * 16384)
        dma(a, vXo, SRD0, XS, j * 128 + 65536, LB, XREG + slot * 16384 + 8192)

    def wdma(j):
        slot = j % 2
        dma(a, vWo, SRD1, WS_, j * 64 * 3072, LB, WREG + slot * 16384)
        dma(a, vWo, SRD1, WS_, j * 64 * 3072 + 32 * 3072, LB, WREG + slot * 16384 + 8192)

    def reads(j, s, buf):
        xs, wsl = (j % 3) * 16384, (j % 2) * 16384
        for tt in range(2):
            a(f"ds_read_b128 {vr(FX[buf]+4*tt,4)}, v{vXa+s} offset:{xs + tt*4096}")
        a(f"ds_read_b64_tr_b16 {vr(FW[buf],2)}, v{vWa} offset:{wsl + s*4096}")
        a(f"ds_read_b64_tr_b16 {vr(FW[buf]+2,2)}, v{vWa} offset:{wsl + s*4096 + 1024}")

    def mainloop(vtype):
        stamp(a, 1)
        vm = VmTracker()
        xdma(0); vm.issue("X0", 2)
        wdma(0); vm.issue("W0", 2)
        xdma(1); vm.issue("X1", 2)
        wdma(1); vm.issue("W1", 2)
        xdma(2); vm.issue("X2", 2)
        for i in range(32):
            a(f"v_mov_b32 v{ACC+i}, 0")
        a(f"s_waitcnt vmcnt({vm.wait_for(['X0','W0'])})")
        a("s_barrier")
        stamp(a, 2)
        reads(0, 0, 0)
        buf = 0
        for j in range(8):
            for s in range(4):
                if s < 3:
                    reads(j, s + 1, buf ^ 1)
                    a("s_waitcnt lgkmcnt(4)")
                else:
                    a("s_waitcnt lgkmcnt(0)")
                    if j < 7:
                        a(f"s_waitcnt vmcnt({vm.wait_for([f'X{j+1}', f'W{j+1}'])})")
                        a("s_barrier")
                        if j + 2 < 8:
                            wdma(j + 2); vm.issue(f"W{j+2}", 2)
                        if j + 3 < 8:
                            xdma(j + 3); vm.issue(f"X{j+3}", 2)
                        reads(j + 1, 0, buf ^ 1)
                for tt in range(2):
                    acc = vr(ACC + 16 * tt, 16)
                    if vtype:
                        a(f"v_mfma_f32_32x32x16_bf16 {acc}, {vr(FX[buf]+4*tt,4)}, {vr(FW[buf],4)}, {acc}")
                    else:
                        a(f"v_mfma_f32_32x32x16_bf16 {acc}, {vr(FW[buf],4)}, {vr(FX[buf]+4*tt,4)}, {acc}")
                buf ^= 1

    Lv = f"{pfx}_v"
    a(f"s_cmp_ge_u32 s{CT}, 8")
    a(f"s_cbranch_scc1 {Lv}")
    mainloop(False)
    stamp(a, 3)
    a(f"s_and_b32 s60, s{CT}, 3")
    a(f"s_lshl_b32 s60, s60, 3")
    a(f"s_lshl_b32 s62, s{WC}, 1")
    a(f"s_add_u32 s60, s60, s62")
    a(f"s_lshl_b32 s60, s60, 16")
    a(f"s_lshl_b32 s62, s{RT}, 2")
    a(f"s_lshl_b32 s63, s{WR}, 1")
    a(f"s_add_u32 s62, s62, s63")
    a(f"s_lshl_b32 s62, s62, 10")
    a(f"s_add_u32 s60, s60, s62")
    a(f"v_lshlrev_b32 v1, 4, v0")
    a(f"s_cmp_lt_u32 s{CT}, 4")
    a(f"s_cselect_b32 s62, 0x{QSCALE:x}, 1.0")
    a(f"s_cbranch_scc1 {pfx}_isq")
    a(f"s_add_u32 s60, s60, 0x{KF:x}")
    a("v_and_b32 v2, 0x33, v0")
    a("v_bfe_u32 v3, v0, 2, 1")
    a("v_lshlrev_b32 v3, 3, v3")
    a("v_bfe_u32 v4, v0, 3, 1")
    a("v_lshlrev_b32 v4, 2, v4")
    a("v_or3_b32 v2, v2, v3, v4")
    a("v_lshlrev_b32 v1, 4, v2")
    a.label(f"{pfx}_isq")
    a("s_nop 7")
    a("s_nop 7")
    for tt in range(2):
        for i in range(16):
            a(f"v_mul_f32 v{ACC+16*tt+i}, s62, v{ACC+16*tt+i}")
        for hh in range(2):
            d = 8 + 4 * (2 * tt + hh)
            for i in range(4):
                r = ACC + 16 * tt + 8 * hh + 2 * i
                a(f"v_cvt_pk_bf16_f32 v{d+i}, v{r}, v{r+1}")
            a(f"s_add_u32 s63, s60, {hh*65536 + tt*1024}")
            a(f"buffer_store_dwordx4 {vr(d,4)}, v1, s[{SRD2}:{SRD2+3}], s63 offen {ST_MODS}")
    a(f"s_branch {end_label}")
    a.label(Lv)
    mainloop(True)
    stamp(a, 3)
    a(f"s_and_b32 s60, s{CT}, 3")
    a(f"s_lshl_b32 s60, s60, 3")
    a(f"s_lshl_b32 s62, s{WC}, 1")
    a(f"s_add_u32 s60, s60, s62")
    a(f"s_lshl_b32 s60, s60, 16")
    a(f"s_lshl_b32 s62, s{RT}, 2")
    a(f"s_lshl_b32 s63, s{WR}, 1")
    a(f"s_add_u32 s62, s62, s63")
    a(f"s_lshl_b32 s62, s62, 10")
    a(f"s_add_u32 s60, s60, s62")
    a(f"s_add_u32 s60, s60, 0x{VF:x}")
    a("v_bfe_u32 v2, v0, 4, 1")
    a("v_lshlrev_b32 v2, 16, v2")
    a("v_lshrrev_b32 v3, 5, v0")
    a("v_lshlrev_b32 v3, 8, v3")
    a("v_and_b32 v4, 15, v0")
    a("v_lshlrev_b32 v4, 4, v4")
    a("v_add3_u32 v1, v2, v3, v4")
    a("s_nop 7")
    a("s_nop 7")
    for tt in range(2):
        for jj in range(2):
            d = 8 + 4 * (2 * tt + jj)
            for i in range(4):
                r = ACC + 16 * tt + 8 * jj + 2 * i
                a(f"v_cvt_pk_bf16_f32 v{d+i}, v{r}, v{r+1}")
            a(f"s_add_u32 s63, s60, {tt*1024 + jj*512}")
            a(f"buffer_store_dwordx4 {vr(d,4)}, v1, s[{SRD2}:{SRD2+3}], s63 offen {ST_MODS}")
    a(f"s_branch {end_label}")


def role_gate(a, task, pfx, end_label):
    a.c("---- gate ----")
    a("s_waitcnt lgkmcnt(0)")
    mk_srd(a, SRD0, P_AX, 2048 * 1024)
    mk_srd(a, SRD1, P_GW, 1024)
    mk_srd(a, SRD2, P_WS, WS_BYTES)
    a(f"s_lshl_b32 s60, s{task}, 5")
    a(f"s_lshl_b32 s61, s{S_W}, 2")
    a(f"s_add_u32 s60, s60, s61")
    a(f"s_lshl_b32 s61, s60, 10")
    a("v_lshlrev_b32 v1, 4, v0")
    a(f"buffer_load_dwordx4 v[4:7], v1, s[{SRD1}:{SRD1+3}], 0 offen")
    for r in range(4):
        a(f"s_add_u32 s62, s61, {r*1024}")
        a(f"buffer_load_dwordx4 v[{8+4*r}:{11+4*r}], v1, s[{SRD0}:{SRD0+3}], s62 offen")
    a("s_waitcnt vmcnt(0)")
    for r in range(4):
        a(f"v_mov_b32 v{28+r}, 0")
    for i in range(4):
        for r in range(4):
            a(f"v_dot2_f32_bf16 v{28+r}, v{8+4*r+i}, v{4+i}, v{28+r}")
    a("s_nop 2")
    for sh in ("row_shr:1", "row_shr:2", "row_shr:4", "row_shr:8"):
        for r in range(4):
            a(f"v_add_f32_dpp v{28+r}, v{28+r}, v{28+r} {sh} row_mask:0xf bank_mask:0xf bound_ctrl:0")
        a("s_nop 1")
    for r in range(4):
        a(f"v_add_f32_dpp v{28+r}, v{28+r}, v{28+r} row_bcast:15 row_mask:0xa bank_mask:0xf")
    a("s_nop 1")
    for r in range(4):
        a(f"v_add_f32_dpp v{28+r}, v{28+r}, v{28+r} row_bcast:31 row_mask:0xc bank_mask:0xf")
    a("s_nop 1")
    for r in range(4):
        a(f"v_mul_f32 v{28+r}, 0xbfb8aa3b, v{28+r}")
    for r in range(4):
        a(f"v_exp_f32 v{28+r}, v{28+r}")
    a("s_nop 0")
    for r in range(4):
        a(f"v_add_f32 v{28+r}, 1.0, v{28+r}")
    for r in range(4):
        a(f"v_rcp_f32 v{28+r}, v{28+r}")
    a("s_nop 0")
    a("v_cmp_eq_u32 vcc, 63, v0")
    a("s_and_saveexec_b64 s[62:63], vcc")
    a(f"s_lshl_b32 s61, s60, 2")
    a(f"s_add_u32 s61, s61, 0x{GV:x}")
    a("v_mov_b32 v1, 0")
    a(f"buffer_store_dwordx4 v[28:31], v1, s[{SRD2}:{SRD2+3}], s61 offen {ST_MODS}")
    a(f"s_branch {end_label}")


def role_g2(a, task, pfx, end_label):
    RT, CT, WR, WC = 38, 39, 56, 57
    XS, WS_, LB = 58, 59, 61
    vXo, vWo, vXa, vWa = 1, 2, 3, 7
    FX = [8, 24]
    FG = [16, 32]
    FU = [20, 36]
    AG, AU = 40, 72
    XREG, WREG = 0, 32768
    a.c("---- G2: gate/up tile ----")
    a(f"s_and_b32 s62, s{task}, 7")
    a(f"s_lshr_b32 s63, s{task}, 3")
    a(f"s_and_b32 s60, s62, 1")
    a(f"s_mul_i32 s60, s60, 22")
    a(f"s_add_u32 s63, s63, s60")
    a(f"s_lshr_b32 s{CT}, s63, 2")
    a(f"s_lshr_b32 s{RT}, s62, 1")
    a(f"s_lshl_b32 s{RT}, s{RT}, 2")
    a(f"s_and_b32 s60, s63, 3")
    a(f"s_add_u32 s{RT}, s{RT}, s60")
    a(f"s_lshr_b32 s{WR}, s{S_W}, 2")
    a(f"s_and_b32 s{WC}, s{S_W}, 3")
    x_dma_voffset(a, vXo, 8, 9)
    w256_dma_voffset(a, vWo, 2752, 8, 9)
    x_frag_addrs(a, vXa, WR, 8, 9)
    w256_frag_addr(a, vWa, WC, WREG, 8, 9, 10)
    a(f"s_lshl_b32 s{XS}, s{RT}, 7")
    a(f"s_lshl_b32 s60, s{S_W}, 3")
    a(f"s_add_u32 s{XS}, s{XS}, s60")
    a(f"s_lshl_b32 s{XS}, s{XS}, 10")
    a(f"s_mul_i32 s{WS_}, s{S_W}, {4*2752}")
    a(f"s_lshl_b32 s60, s{CT}, 8")
    a(f"s_add_u32 s{WS_}, s{WS_}, s60")
    a(f"s_lshl_b32 s{LB}, s{S_W}, 10")
    a("s_waitcnt lgkmcnt(0)")
    mk_srd(a, SRD0, P_AX, 2048 * 1024)
    mk_srd(a, SRD1, P_WG, 512 * 2752)
    mk_srd(a, SRD3, P_WU, 512 * 2752)
    mk_srd(a, SRD2, P_WS, WS_BYTES)

    def xdma(j):
        slot = j % 2
        dma(a, vXo, SRD0, XS, j * 128, LB, XREG + slot * 16384)
        dma(a, vXo, SRD0, XS, j * 128 + 65536, LB, XREG + slot * 16384 + 8192)

    def wdma(u):
        slot = u % 3
        dma(a, vWo, SRD1, WS_, u * 32 * 2752, LB, WREG + slot * 16384)
        dma(a, vWo, SRD3, WS_, u * 32 * 2752, LB, WREG + slot * 16384 + 8192)

    def reads(u, s, buf):
        xs, wsl = ((u >> 1) % 2) * 16384, (u % 3) * 16384
        sx = 2 * (u & 1) + s
        for tt in range(2):
            a(f"ds_read_b128 {vr(FX[buf]+4*tt,4)}, v{vXa+sx} offset:{xs + tt*4096}")
        for F, mo in ((FG, 0), (FU, 8192)):
            a(f"ds_read_b64_tr_b16 {vr(F[buf],2)}, v{vWa} offset:{wsl + mo + s*4096}")
            a(f"ds_read_b64_tr_b16 {vr(F[buf]+2,2)}, v{vWa} offset:{wsl + mo + s*4096 + 1024}")

    stamp(a, 1)
    vm = VmTracker()
    xdma(0); vm.issue("X0", 2)
    wdma(0); vm.issue("W0", 2)
    wdma(1); vm.issue("W1", 2)
    xdma(1); vm.issue("X1", 2)
    wdma(2); vm.issue("W2", 2)
    for i in range(64):
        a(f"v_mov_b32 v{AG+i}, 0")
    a(f"s_waitcnt vmcnt({vm.wait_for(['X0','W0'])})")
    a("s_barrier")
    stamp(a, 2)
    reads(0, 0, 0)
    buf = 0
    for u in range(16):
        for s in range(2):
            if s == 0:
                reads(u, 1, buf ^ 1)
                a("s_waitcnt lgkmcnt(6)")
            else:
                a("s_waitcnt lgkmcnt(0)")
                if u < 15:
                    a(f"s_waitcnt vmcnt({vm.wait_for([f'W{u+1}', f'X{(u+1)>>1}'])})")
                    a("s_barrier")
                    if u + 3 < 16:
                        wdma(u + 3); vm.issue(f"W{u+3}", 2)
                    if (u & 1) and (u >> 1) + 2 < 8:
                        xdma((u >> 1) + 2); vm.issue(f"X{(u>>1)+2}", 2)
                    reads(u + 1, 0, buf ^ 1)
            for tt in range(2):
                ag, au = vr(AG + 16 * tt, 16), vr(AU + 16 * tt, 16)
                a(f"v_mfma_f32_32x32x16_bf16 {ag}, {vr(FG[buf],4)}, {vr(FX[buf]+4*tt,4)}, {ag}")
                a(f"v_mfma_f32_32x32x16_bf16 {au}, {vr(FU[buf],4)}, {vr(FX[buf]+4*tt,4)}, {au}")
            buf ^= 1
    stamp(a, 3)
    a(f"s_lshl_b32 s62, s{RT}, 2")
    a(f"s_lshl_b32 s63, s{WR}, 1")
    a(f"s_add_u32 s62, s62, s63")
    a(f"s_mul_i32 s62, s62, {HSTEPS}")
    a(f"s_lshl_b32 s60, s{CT}, 3")
    a(f"s_lshl_b32 s63, s{WC}, 1")
    a(f"s_add_u32 s60, s60, s63")
    a(f"s_cmp_ge_u32 s60, 86")
    a(f"s_cselect_b32 s64, 0, 1.0")
    a(f"s_add_u32 s60, s60, s62")
    a(f"s_lshl_b32 s60, s60, 10")
    a(f"s_add_u32 s60, s60, 0x{HF:x}")
    a("v_lshlrev_b32 v1, 4, v0")
    a("s_nop 7")
    a("s_nop 7")
    T = 8
    for tt in range(2):
        for hh in range(2):
            g0, u0 = AG + 16 * tt + 8 * hh, AU + 16 * tt + 8 * hh
            for i in range(8):
                a(f"v_mul_f32 v{T+i}, 0xbfb8aa3b, v{g0+i}")
            for i in range(8):
                a(f"v_exp_f32 v{T+i}, v{T+i}")
            for i in range(8):
                a(f"v_mul_f32 v{u0+i}, v{g0+i}, v{u0+i}")
            for i in range(8):
                a(f"v_add_f32 v{T+i}, 1.0, v{T+i}")
            for i in range(8):
                a(f"v_rcp_f32 v{T+i}, v{T+i}")
            for i in range(8):
                a(f"v_mul_f32 v{u0+i}, s64, v{u0+i}")
            for i in range(8):
                a(f"v_mul_f32 v{u0+i}, v{u0+i}, v{T+i}")
            d = 16 + 4 * (2 * tt + hh)
            for i in range(4):
                a(f"v_cvt_pk_bf16_f32 v{d+i}, v{u0+2*i}, v{u0+2*i+1}")
            a(f"s_add_u32 s63, s60, {tt*HSTEPS*1024 + hh*1024}")
            a(f"buffer_store_dwordx4 {vr(d,4)}, v1, s[{SRD2}:{SRD2+3}], s63 offen {ST_MODS}")
    a(f"s_branch {end_label}")


def role_attn(a, task, pfx, end_label):
    H, QB, QG, KH, ST = 38, 39, 56, 57, 58
    GS, LB = 59, 61
    MSK = 64
    vKa, vVa, vDo = 1, 2, 3
    SA, SB, OA, OB = 16, 32, 48, 64
    QA, QBf = 80, 84
    KB = [88, 92]
    VB = [96, 104]
    IDX = 112
    a.c("---- attention ----")
    a(f"s_and_b32 s62, s{task}, 7")
    a(f"s_lshr_b32 s63, s{task}, 3")
    a(f"s_lshl_b32 s{H}, s62, 2")
    a(f"s_lshr_b32 s60, s63, 3")
    a(f"s_add_u32 s{H}, s{H}, s60")
    a(f"s_and_b32 s{QB}, s63, 7")
    a(f"s_and_b32 s{QG}, s{S_W}, 3")
    a(f"s_lshr_b32 s{KH}, s{S_W}, 2")
    a(f"s_lshl_b32 s{GS}, s{H}, 16")
    a(f"s_lshl_b32 s60, s{KH}, 15")
    a(f"s_add_u32 s{GS}, s{GS}, s60")
    a(f"s_lshl_b32 s60, s{QG}, 10")
    a(f"s_add_u32 s{GS}, s{GS}, s60")
    a(f"s_lshl_b32 s{LB}, s{KH}, 13")
    a(f"s_add_u32 s{LB}, s{LB}, s60")
    a(f"v_lshlrev_b32 v{vDo}, 4, v0")
    a(f"s_lshl_b32 s60, s{KH}, 13")
    a(f"v_add_u32 v{vKa}, s60, v{vDo}")
    a(f"v_lshrrev_b32 v4, 5, v0")
    a(f"v_lshlrev_b32 v4, 8, v4")
    a(f"v_and_b32 v5, 15, v0")
    a(f"v_lshlrev_b32 v5, 4, v5")
    a(f"s_add_u32 s60, s60, 4096")
    a(f"v_add3_u32 v{vVa}, v4, v5, s60")
    a(f"s_mov_b32 s{MSK}, 0x0000ffff")
    a(f"s_mov_b32 s{MSK+1}, 0x0000ffff")
    a("s_waitcnt lgkmcnt(0)")
    mk_srd(a, SRD2, P_WS, WS_BYTES)

    def kvdma(st_imm=None, slot=None, dyn=False):
        if not dyn:
            dma(a, vDo, SRD2, GS, KF + st_imm * 4096, LB, slot * 16384)
            dma(a, vDo, SRD2, GS, VF + st_imm * 4096, LB, slot * 16384 + 4096)

    stamp(a, 1)
    a(f"s_lshl_b32 s60, s{H}, 6")
    a(f"s_lshl_b32 s62, s{QB}, 3")
    a(f"s_add_u32 s60, s60, s62")
    a(f"s_lshl_b32 s62, s{QG}, 1")
    a(f"s_add_u32 s60, s60, s62")
    a(f"s_lshl_b32 s60, s60, 10")
    a(f"s_add_u32 s62, s60, 1024")
    a(f"buffer_load_dwordx4 {vr(QA,4)}, v{vDo}, s[{SRD2}:{SRD2+3}], s60 offen")
    a(f"buffer_load_dwordx4 {vr(QBf,4)}, v{vDo}, s[{SRD2}:{SRD2+3}], s62 offen")
    for st in range(3):
        kvdma(st, st)
    for i in range(16):
        a(f"v_mov_b32 v{OA+i}, 0")
        a(f"v_mov_b32 v{OB+i}, 0")
        a(f"v_mov_b32 v{SB+i}, 0")
    a(f"v_mov_b32 v{IDX}, 0xdddddddd")
    a("v_and_b32 v4, 16, v0")
    a("v_cmp_ne_u32 vcc, 0, v4")
    a("v_mov_b32 v5, 0x3f803f80")
    a("s_nop 1")
    for i in range(16):
        a(f"v_cndmask_b32 v{VB[0]+i}, 0, v5, vcc")
    NXT, SLOT = 66, 67
    a(f"s_add_u32 s{NXT}, s{GS}, {3*4096}")
    a(f"s_mov_b32 s{SLOT}, {3*16384}")
    a(f"s_mov_b32 s{ST}, 0")
    a("s_waitcnt vmcnt(4)")
    a("s_barrier")
    stamp(a, 2)

    def kread(buf, off):
        a(f"ds_read_b128 {vr(KB[buf],4)}, v{vKa} offset:{off}")

    def vread(buf, off):
        a(f"s_mov_b64 exec, s[{MSK}:{MSK+1}]")
        a(f"ds_read_b128 {vr(VB[buf],4)}, v{vVa} offset:{off}")
        a(f"ds_read_b128 {vr(VB[buf]+4,4)}, v{vVa} offset:{off+512}")
        a("s_mov_b64 exec, -1")

    kread(0, 0)
    vread(0, 0)
    a("s_waitcnt lgkmcnt(0)")
    a(f"v_mfma_f32_32x32x16_bf16 {vr(SA,16)}, {vr(KB[0],4)}, {vr(QA,4)}, 0")
    a("s_nop 7")
    a("s_nop 7")
    Lloop = f"{pfx}_loop"
    a(".p2align 6")
    a.label(Lloop)
    for b in range(4):
        cur, nxt = b & 1, (b & 1) ^ 1
        exA = [f"v_exp_f32 v{SA+i}, v{SA+i}" for i in range(16)]
        exB = [f"v_exp_f32 v{SB+i}, v{SB+i}" for i in range(16)]
        if b == 3:
            Lt, Lj = a.uid(pfx + "_t"), a.uid(pfx + "_j")
            a(f"s_cmp_lt_u32 s{ST}, 5")
            a(f"s_cbranch_scc0 {Lt}")
            a("s_waitcnt vmcnt(2)")
            a("s_barrier")
            a(f"s_add_u32 m0, s{LB}, s{SLOT}")
            a(f"s_add_u32 s60, s{NXT}, 0x{KF:x}")
            a(f"buffer_load_dwordx4 v{vDo}, s[{SRD2}:{SRD2+3}], s60 offen lds")
            a(f"s_add_u32 m0, m0, 4096")
            a(f"s_add_u32 s60, s{NXT}, 0x{VF:x}")
            a(f"buffer_load_dwordx4 v{vDo}, s[{SRD2}:{SRD2+3}], s60 offen lds")
            a(f"s_add_u32 s{NXT}, s{NXT}, 4096")
            a(f"s_add_u32 s{SLOT}, s{SLOT}, 16384")
            a(f"s_and_b32 s{SLOT}, s{SLOT}, 0xffff")
            a(f"s_branch {Lj}")
            a.label(Lt)
            a("s_waitcnt vmcnt(0)")
            a("s_barrier")
            a.label(Lj)
            a(f"v_add_u32 v{vKa}, 16384, v{vKa}")
            a(f"v_add_u32 v{vVa}, 16384, v{vVa}")
            a(f"v_and_b32 v{vKa}, 0xffff, v{vKa}")
            a(f"v_and_b32 v{vVa}, 0xffff, v{vVa}")
            noff = 0
        else:
            noff = (b + 1) * 1024
        a(exA[0])
        kread(nxt, noff)
        a(f"v_smfmac_f32_32x32x32_bf16 {vr(OB,16)}, {vr(VB[nxt],4)}, {vr(SB,8)}, v{IDX}")
        for e in exA[1:4]:
            a(e)
        a(f"v_smfmac_f32_32x32x32_bf16 {vr(OB,16)}, {vr(VB[nxt]+4,4)}, {vr(SB+8,8)}, v{IDX}")
        for e in exA[4:7]:
            a(e)
        a(f"v_mfma_f32_32x32x16_bf16 {vr(SB,16)}, {vr(KB[cur],4)}, {vr(QBf,4)}, 0")
        vread(nxt, noff)
        for e in exA[7:16]:
            a(e)
        a("s_waitcnt lgkmcnt(2)")
        a(exB[0])
        a(f"v_smfmac_f32_32x32x32_bf16 {vr(OA,16)}, {vr(VB[cur],4)}, {vr(SA,8)}, v{IDX}")
        for e in exB[1:4]:
            a(e)
        a(f"v_smfmac_f32_32x32x32_bf16 {vr(OA,16)}, {vr(VB[cur]+4,4)}, {vr(SA+8,8)}, v{IDX}")
        for e in exB[4:7]:
            a(e)
        a(f"v_mfma_f32_32x32x16_bf16 {vr(SA,16)}, {vr(KB[nxt],4)}, {vr(QA,4)}, 0")
        for e in exB[7:16]:
            a(e)
    a(f"s_add_u32 s{ST}, s{ST}, 1")
    a(f"s_cmp_lt_u32 s{ST}, 8")
    a(f"s_cbranch_scc1 {Lloop}")
    stamp(a, 3)
    a(f"v_smfmac_f32_32x32x32_bf16 {vr(OB,16)}, {vr(VB[1],4)}, {vr(SB,8)}, v{IDX}")
    a(f"v_smfmac_f32_32x32x32_bf16 {vr(OB,16)}, {vr(VB[1]+4,4)}, {vr(SB+8,8)}, v{IDX}")
    a("s_waitcnt lgkmcnt(0)")
    a("s_barrier")
    a(f"s_mul_i32 s60, s{QG}, {2*64*48}")
    a("v_mul_u32_u24 v4, 48, v0")
    a("v_add_u32 v4, s60, v4")
    a("s_nop 7")
    a("s_nop 7")
    Lw = f"{pfx}_kh1"
    a(f"s_cmp_eq_u32 s{KH}, 0")
    a(f"s_cbranch_scc1 {Lw}")
    for t, O in enumerate((OA, OB)):
        for q in range(3):
            a(f"ds_write_b128 v4, {vr(O+4*q,4)} offset:{t*3072 + q*16}")
    a("s_waitcnt lgkmcnt(0)")
    a("s_barrier")
    a(f"s_branch {end_label}")
    a.label(Lw)
    a("s_barrier")
    for t in range(2):
        for q in range(3):
            a(f"ds_read_b128 {vr(80+12*t+4*q,4)}, v4 offset:{t*3072 + q*16}")
    a("s_waitcnt lgkmcnt(0)")
    for t, O in enumerate((OA, OB)):
        for i in range(9):
            a(f"v_add_f32 v{O+i}, v{O+i}, v{80+12*t+i}")
    for t, O in enumerate((OA, OB)):
        a(f"v_rcp_f32 v{O+8}, v{O+8}")
    a("s_nop 0")
    a(f"s_lshl_b32 s60, s{QB}, 3")
    a(f"s_lshl_b32 s62, s{QG}, 1")
    a(f"s_add_u32 s60, s60, s62")
    a(f"s_lshl_b32 s60, s60, 5")
    a(f"s_add_u32 s60, s60, s{H}")
    a(f"s_lshl_b32 s60, s60, 10")
    a(f"s_add_u32 s60, s60, 0x{OF:x}")
    for t, O in enumerate((OA, OB)):
        for i in range(8):
            a(f"v_mul_f32 v{O+i}, v{O+i}, v{O+8}")
        for i in range(4):
            a(f"v_cvt_pk_bf16_f32 v{80+4*t+i}, v{O+2*i}, v{O+2*i+1}")
        a(f"s_add_u32 s62, s60, {t*32*1024}")
        a(f"buffer_store_dwordx4 {vr(80+4*t,4)}, v{vDo}, s[{SRD2}:{SRD2+3}], s62 offen {ST_MODS}")
    a(f"s_branch {end_label}")


def role_g3(a, task, pfx, end_label):
    RT, CT, TR, TC, KHh = 38, 39, 56, 57, 58
    AS, WS_, LB = 59, 62, 61
    vAo, vWo, vAa, vWa, vG = 1, 2, 3, 4, 5
    FA = [8, 16]
    FW = [12, 20]
    ACCB, ACCA = 32, 48
    NS = 5
    a.c("---- G3: final tile ----")
    a(f"s_and_b32 s63, s{task}, 7")
    a(f"s_lshr_b32 s64, s{task}, 3")
    a(f"s_lshl_b32 s{RT}, s63, 2")
    a(f"s_and_b32 s60, s64, 3")
    a(f"s_add_u32 s{RT}, s{RT}, s60")
    a(f"s_lshr_b32 s{CT}, s64, 2")
    a(f"s_bfe_u32 s{TR}, s{S_W}, 0x10001")
    a(f"s_and_b32 s{TC}, s{S_W}, 1")
    a(f"s_lshr_b32 s{KHh}, s{S_W}, 2")
    a(f"v_lshlrev_b32 v{vAo}, 4, v0")
    a("v_bfe_u32 v8, v0, 2, 1")
    a("v_bfe_u32 v9, v0, 4, 1")
    a("v_xor_b32 v8, v8, v9")
    a("v_lshlrev_b32 v8, 6, v8")
    a("v_and_b32 v9, 3, v0")
    a("v_lshlrev_b32 v9, 4, v9")
    a("v_lshrrev_b32 v10, 3, v0")
    a("v_lshlrev_b32 v10, 10, v10")
    a(f"v_add3_u32 v{vWo}, v8, v9, v10")
    a(f"s_lshl_b32 s60, s{TR}, 12")
    a(f"s_lshl_b32 s63, s{KHh}, 11")
    a(f"s_add_u32 s60, s60, s63")
    a(f"v_add_u32 v{vAa}, s60, v{vAo}")
    a("v_lshrrev_b32 v8, 5, v0")
    a("v_lshlrev_b32 v8, 2, v8")
    a("v_bfe_u32 v9, v0, 2, 2")
    a("v_add_u32 v8, v8, v9")
    a("v_lshlrev_b32 v8, 7, v8")
    a("v_bfe_u32 v9, v0, 3, 1")
    a(f"v_xor_b32 v9, s{TC}, v9")
    a("v_lshlrev_b32 v9, 6, v9")
    a("v_add_u32 v8, v8, v9")
    a("v_bfe_u32 v9, v0, 4, 1")
    a("v_lshlrev_b32 v9, 5, v9")
    a("v_and_b32 v10, 3, v0")
    a("v_lshlrev_b32 v10, 3, v10")
    a("v_add3_u32 v8, v8, v9, v10")
    a(f"s_lshl_b32 s60, s{KHh}, 12")
    a(f"s_add_u32 s60, s60, 8192")
    a(f"v_add_u32 v{vWa}, s60, v8")
    AH, AO = 65, 66
    a(f"s_lshl_b32 s60, s{RT}, 1")
    a(f"s_add_u32 s60, s60, s{KHh}")
    a(f"s_and_b32 s63, s{S_W}, 3")
    a(f"s_mul_i32 s{AH}, s60, {HSTEPS}")
    a(f"s_add_u32 s{AH}, s{AH}, s63")
    a(f"s_lshl_b32 s{AH}, s{AH}, 10")
    a(f"s_add_u32 s{AH}, s{AH}, 0x{HF:x}")
    a(f"s_lshl_b32 s{AO}, s60, 5")
    a(f"s_add_u32 s{AO}, s{AO}, s63")
    a(f"s_lshl_b32 s{AO}, s{AO}, 10")
    a(f"s_add_u32 s{AO}, s{AO}, 0x{OF:x}")
    a(f"s_lshl_b32 s{WS_}, s{S_W}, 13")
    a(f"s_lshl_b32 s60, s{CT}, 7")
    a(f"s_add_u32 s{WS_}, s{WS_}, s60")
    a(f"s_lshl_b32 s{LB}, s{S_W}, 10")
    a(f"s_lshl_b32 s60, s{RT}, 6")
    a(f"s_lshl_b32 s63, s{TR}, 5")
    a(f"s_add_u32 s60, s60, s63")
    a(f"s_lshl_b32 s60, s60, 2")
    a(f"s_add_u32 s67, s60, 0x{GV:x}")
    a("v_and_b32 v8, 31, v0")
    a("v_lshlrev_b32 v8, 2, v8")
    a("s_waitcnt lgkmcnt(0)")
    mk_srd(a, SRD0, P_WD, 1376 * 1024)
    mk_srd(a, SRD1, P_WO, 512 * 1024)
    mk_srd(a, SRD2, P_WS, WS_BYTES)
    mk_srd(a, SRD3, P_OUT, 2048 * 1024)
    vm = VmTracker()
    a(f"buffer_load_dword v{vG}, v8, s[{SRD2}:{SRD2+3}], s67 offen")
    vm.issue("G")
    stages = [("H", i) for i in range(22)] + [("O", i) for i in range(8)]

    def sdma(n):
        kind, i = stages[n]
        slot = n % NS
        if kind == "H":
            dma(a, vAo, SRD2, AH, i * 4096, LB, slot * 16384)
            dma(a, vWo, SRD0, WS_, i * 64 * 1024, LB, slot * 16384 + 8192)
        else:
            dma(a, vAo, SRD2, AO, i * 4096, LB, slot * 16384)
            dma(a, vWo, SRD1, WS_, i * 64 * 1024, LB, slot * 16384 + 8192)
        vm.issue(f"S{n}", 2)

    vAa2, vWa2 = 6, 7
    a(f"v_add_u32 v{vAa2}, 0x10000, v{vAa}")
    a(f"v_add_u32 v{vWa2}, 0x10000, v{vWa}")

    def reads(n, s, buf):
        slot = n % NS
        ra, rw, so = (vAa, vWa, slot * 16384) if slot < 4 else (vAa2, vWa2, 0)
        a(f"ds_read_b128 {vr(FA[buf],4)}, v{ra} offset:{so + s*1024}")
        a(f"ds_read_b64_tr_b16 {vr(FW[buf],2)}, v{rw} offset:{so + s*2048}")
        a(f"ds_read_b64_tr_b16 {vr(FW[buf]+2,2)}, v{rw} offset:{so + s*2048 + 1024}")

    stamp(a, 1)
    for n in range(NS):
        sdma(n)
    for i in range(32):
        a(f"v_mov_b32 v{ACCB+i}, 0")
    a(f"s_waitcnt vmcnt({vm.wait_for(['S0'])})")
    a("s_barrier")
    stamp(a, 2)
    reads(0, 0, 0)
    buf = 0
    N = len(stages)
    for n in range(N):
        acc = ACCB if stages[n][0] == "H" else ACCA
        for s in range(2):
            if s == 0:
                reads(n, 1, buf ^ 1)
                a("s_waitcnt lgkmcnt(3)")
            else:
                a("s_waitcnt lgkmcnt(0)")
                if n < N - 1:
                    a(f"s_waitcnt vmcnt({vm.wait_for([f'S{n+1}'])})")
                    a("s_barrier")
                    if n + NS < N:
                        sdma(n + NS)
                    reads(n + 1, 0, buf ^ 1)
            a(f"v_mfma_f32_32x32x16_bf16 {vr(acc,16)}, {vr(FW[buf],4)}, {vr(FA[buf],4)}, {vr(acc,16)}")
            buf ^= 1
    stamp(a, 3)
    a("s_nop 7")
    a("s_nop 7")
    a(f"v_sub_f32 v6, 1.0, v{vG}")
    for i in range(16):
        a(f"v_mul_f32 v{ACCB+i}, v6, v{ACCB+i}")
    for i in range(16):
        a(f"v_fmac_f32 v{ACCB+i}, v{vG}, v{ACCA+i}")
    a("s_barrier")
    a("v_and_b32 v8, 31, v0")
    a(f"s_lshl_b32 s60, s{TR}, 5")
    a("v_add_u32 v8, s60, v8")
    a("v_mul_u32_u24 v8, 272, v8")
    a("v_lshrrev_b32 v9, 5, v0")
    a("v_lshlrev_b32 v9, 4, v9")
    a(f"s_mul_i32 s60, s{KHh}, {64*272}")
    a(f"s_lshl_b32 s63, s{TC}, 7")
    a("s_add_u32 s60, s60, s63")
    a("v_add3_u32 v8, v8, v9, s60")
    for q in range(4):
        a(f"ds_write_b128 v8, {vr(ACCB+4*q,4)} offset:{q*32}")
    a("s_waitcnt lgkmcnt(0)")
    a("s_barrier")
    a(f"s_lshl_b32 s60, s{S_W}, 3")
    a("v_lshrrev_b32 v8, 3, v0")
    a("v_add_u32 v8, s60, v8")
    a("v_and_b32 v9, 7, v0")
    a("v_mul_u32_u24 v10, 272, v8")
    a("v_lshlrev_b32 v11, 5, v9")
    a("v_add_u32 v10, v10, v11")
    a("ds_read_b128 v[12:15], v10")
    a("ds_read_b128 v[16:19], v10 offset:16")
    a(f"ds_read_b128 v[20:23], v10 offset:{64*272}")
    a(f"ds_read_b128 v[24:27], v10 offset:{64*272+16}")
    a("v_lshlrev_b32 v8, 10, v8")
    a("v_lshlrev_b32 v9, 4, v9")
    a("v_add_u32 v8, v8, v9")
    a(f"s_lshl_b32 s60, s{RT}, 16")
    a(f"s_lshl_b32 s63, s{CT}, 7")
    a("s_add_u32 s60, s60, s63")
    a("s_waitcnt lgkmcnt(0)")
    for i in range(8):
        a(f"v_add_f32 v{12+i}, v{12+i}, v{20+i}")
    for i in range(4):
        a(f"v_cvt_pk_bf16_f32 v{28+i}, v{12+2*i}, v{13+2*i}")
    a(f"buffer_store_dwordx4 v[28:31], v8, s[{SRD3}:{SRD3+3}], s60 offen")
    a(f"s_branch {end_label}")
```

```python
import sys
from asmlib import *
import roles
from roles import (QF, KF, VF, OF, GV, HF, HSTEPS, HSTRIDE, WS_BYTES, QSCALE, S_W, P_AX, P_WQKV, P_WO, P_WG, P_WU, P_WD, P_GW,
                   P_OUT, P_DBG, P_WS, SRD0, SRD1, SRD2, SRD3, F_QKV, F_H, F_O, F_G, EPOCH, S_NONCE,
                   mk_srd, dma, x_dma_voffset, w256_dma_voffset, x_frag_addrs, w256_frag_addr,
                   nonce_issue, publish, wait_flags, stamp, stamp_flush)

NAME = "gated_mix__mha_block__swiglu_ffn__prompt"
ST = "sc0 sc1"
LD = "sc1"

OPT = dict(prefetch=True)


def gemm_xw_mainloop(a, cfg):
    pass


def interleave(a, mf, rd):
    k = len(mf)
    per = [len(rd) // k + (1 if i < len(rd) % k else 0) for i in range(k)]
    p = 0
    for i, m in enumerate(mf):
        a(m)
        for _ in range(per[i]):
            a(rd[p]); p += 1

def tlb_warm(a):
    spare = [0x0, 0x201000, 0x402000, 0x603000, 0x804000, HF + 24*HSTRIDE*1024 + 88*1024, HF + 48*HSTRIDE*1024 + 88*1024, 0xE80000]
    for i, s in enumerate(spare):
        assert (s >> 21) == i, (i, hex(s))
    a("v_and_b32 v10, 7, v0")
    a("v_mov_b32 v11, 0")
    for i, s in enumerate(spare):
        if i == 0: continue
        a(f"v_cmp_eq_u32 vcc, {i}, v10")
        a(f"v_mov_b32 v12, 0x{s:x}")
        a("s_nop 0")
        a("v_cndmask_b32 v11, v11, v12, vcc")
    mk_srd(a, SRD2, P_WS, WS_BYTES)
    a("s_mov_b64 exec, 0xff")
    a(f"buffer_load_dword v121, v11, s[{SRD2}:{SRD2+3}], 0 offen")
    a("s_mov_b64 exec, -1")

def role_g1(a, pfx):
    RT, CT, WR, WC = 38, 39, 56, 57
    XS, WS_, LB = 58, 59, 61
    vXo, vWo, vXa, vWa = 1, 2, 3, 7
    FB = [10, 26, 42]
    ACC = 60
    XREG, WREG = 0, 49152
    task = 4
    a.c("---- G1: QKV tile ----")
    a(f"s_and_b32 s62, s{task}, 7")
    a(f"s_lshr_b32 s63, s{task}, 3")
    a(f"s_lshr_b32 s{RT}, s62, 2")
    a(f"s_lshl_b32 s{RT}, s{RT}, 3")
    a(f"s_and_b32 s60, s63, 7")
    a(f"s_add_u32 s{RT}, s{RT}, s60")
    a(f"s_and_b32 s{CT}, s62, 3")
    a(f"s_mul_i32 s{CT}, s{CT}, 3")
    a(f"s_lshr_b32 s60, s63, 3")
    a(f"s_add_u32 s{CT}, s{CT}, s60")
    Lc, Ld = f"{pfx}_compute", f"{pfx}_pub"
    a(f"s_cmp_lt_u32 s{S_W}, 4")
    a(f"s_cbranch_scc1 {Lc}")
    x_dma_voffset(a, vXo, 8, 9)
    w256_dma_voffset(a, vWo, 3072, 8, 9)
    a(f"s_sub_u32 s63, s{S_W}, 4")
    a(f"s_lshl_b32 s{XS}, s{RT}, 7")
    a(f"s_lshl_b32 s60, s63, 3")
    a(f"s_add_u32 s{XS}, s{XS}, s60")
    a(f"s_lshl_b32 s{XS}, s{XS}, 10")
    a(f"s_mul_i32 s{WS_}, s63, {4*3072}")
    a(f"s_lshl_b32 s60, s{CT}, 8")
    a(f"s_add_u32 s{WS_}, s{WS_}, s60")
    a(f"s_lshl_b32 s{LB}, s63, 10")
    a("s_waitcnt lgkmcnt(0)")
    mk_srd(a, SRD0, P_AX, 2048 * 1024)
    mk_srd(a, SRD1, P_WQKV, 512 * 3072)

    def xdma(j):
        slot = j % 3
        for m in range(4):
            dma(a, vXo, SRD0, XS, j * 128 + m * 32768, LB, XREG + slot * 16384 + m * 4096)

    def wdma(j):
        slot = j % 2
        for m in range(4):
            dma(a, vWo, SRD1, WS_, j * 64 * 3072 + m * 16 * 3072, LB, WREG + slot * 16384 + m * 4096)

    stamp(a, 1)
    vm = VmTracker()
    xdma(0); vm.issue("X0", 4)
    wdma(0); vm.issue("W0", 4)
    xdma(1); vm.issue("X1", 4)
    wdma(1); vm.issue("W1", 4)
    xdma(2); vm.issue("X2", 4)
    if OPT.get("tlb", 1):
        tlb_warm(a)
    nonce_issue(a)
    mk_srd(a, SRD2, P_WS, WS_BYTES)
    a(f"s_waitcnt vmcnt({vm.wait_for(['X0','W0']) + (1 if OPT.get('tlb', 1) else 0)})")
    a("s_barrier")
    for j in range(7):
        extra = 1 if (OPT.get("tlb", 1) and j == 0) else 0
        a(f"s_waitcnt vmcnt({vm.wait_for([f'X{j+1}', f'W{j+1}']) + extra})")
        a("s_barrier")
        if j + 2 < 8:
            wdma(j + 2)
            if extra:
                vm.issue("TLB", 1)
            vm.issue(f"W{j+2}", 4)
        if j + 3 < 8:
            xdma(j + 3); vm.issue(f"X{j+3}", 4)
    a(f"s_branch {Ld}")
    a.label(Lc)
    a(f"s_lshr_b32 s{WR}, s{S_W}, 1")
    a(f"s_and_b32 s{WC}, s{S_W}, 1")
    x_frag_addrs(a, vXa, WR, 8, 9)
    a(f"s_lshl_b32 s64, s{WC}, 1")
    w256_frag_addr(a, vWa, 64, WREG, 8, 9, 10)
    a(f"v_xor_b32 v{vWa+1}, 64, v{vWa}")
    for i in range(64):
        a(f"v_mov_b32 v{ACC+i}, 0")
    a("s_waitcnt lgkmcnt(0)")
    nonce_issue(a)
    mk_srd(a, SRD2, P_WS, WS_BYTES)

    def reads(j, s, buf):
        xs, wsl = (j % 3) * 16384, (j % 2) * 16384
        L = []
        for tt in range(2):
            L.append(f"ds_read_b128 {vr(FB[buf]+4*tt,4)}, v{vXa+s} offset:{xs + tt*4096}")
        for u in range(2):
            L.append(f"ds_read_b64_tr_b16 {vr(FB[buf]+8+4*u,2)}, v{vWa+u} offset:{wsl + s*4096}")
            L.append(f"ds_read_b64_tr_b16 {vr(FB[buf]+10+4*u,2)}, v{vWa+u} offset:{wsl + s*4096 + 1024}")
        return L

    def mainloop(vtype):
        a("s_barrier")
        stamp(a, 2)
        for l in reads(0, 0, 0) + reads(0, 1, 1):
            a(l)
        n = 0
        for j in range(8):
            for s in range(4):
                nn = n + 2
                jn, sn = nn // 4, nn % 4
                rd = reads(jn, sn, nn % 3) if nn < 32 else []
                if s == 2 and j < 7:
                    a("s_waitcnt lgkmcnt(0)")
                    a("s_barrier")
                    if OPT.get("only_g1"):
                        stamp(a, [5, 6, 7, 12, 13, 14, 15][j])
                    elif j in (0, 2, 4, 6):
                        stamp(a, {0: 12, 2: 13, 4: 14, 6: 15}[j])
                elif s == 3 and j < 7:
                    pass
                else:
                    a(f"s_waitcnt lgkmcnt({6 if n < 31 else 0})")
                b = FB[n % 3]
                mf = []
                for tt in range(2):
                    for u in range(2):
                        acc = vr(ACC + 32 * tt + 16 * u, 16)
                        if vtype:
                            mf.append(f"v_mfma_f32_32x32x16_bf16 {acc}, {vr(b+4*tt,4)}, {vr(b+8+4*u,4)}, {acc}")
                        else:
                            mf.append(f"v_mfma_f32_32x32x16_bf16 {acc}, {vr(b+8+4*u,4)}, {vr(b+4*tt,4)}, {acc}")
                interleave(a, mf, rd)
                n += 1
        stamp(a, 3)

    def tile_base():
        a(f"s_and_b32 s60, s{CT}, 3")
        a(f"s_lshl_b32 s60, s60, 3")
        a(f"s_lshl_b32 s62, s{WC}, 2")
        a(f"s_add_u32 s60, s60, s62")
        a(f"s_lshl_b32 s60, s60, 16")
        a(f"s_lshl_b32 s62, s{RT}, 2")
        a(f"s_lshl_b32 s63, s{WR}, 1")
        a(f"s_add_u32 s62, s62, s63")
        a(f"s_lshl_b32 s62, s62, 10")
        a(f"s_add_u32 s60, s60, s62")

    Lv = f"{pfx}_v"
    a(f"s_cmp_ge_u32 s{CT}, 8")
    a(f"s_cbranch_scc1 {Lv}")
    mainloop(False)
    tile_base()
    a(f"s_add_u32 s60, s60, 0x{QF:x}")
    a(f"v_lshlrev_b32 v1, 4, v0")
    a(f"s_cmp_lt_u32 s{CT}, 4")
    a(f"s_cselect_b32 s62, 0x{QSCALE:x}, 1.0")
    a(f"s_cbranch_scc1 {pfx}_isq")
    a(f"s_add_u32 s60, s60, 0x{KF-QF:x}")
    a("v_and_b32 v2, 0x33, v0")
    a("v_bfe_u32 v3, v0, 2, 1")
    a("v_lshlrev_b32 v3, 3, v3")
    a("v_bfe_u32 v4, v0, 3, 1")
    a("v_lshlrev_b32 v4, 2, v4")
    a("v_or3_b32 v2, v2, v3, v4")
    a("v_lshlrev_b32 v1, 4, v2")
    a.label(f"{pfx}_isq")
    a("s_nop 7")
    cnt = 0
    for tt in range(2):
        for u in range(2):
            for hh in range(2):
                base = ACC + 32 * tt + 16 * u + 8 * hh
                for i in range(8):
                    a(f"v_mul_f32 v{base+i}, s62, v{base+i}")
                d = 10 + 4 * cnt
                cnt += 1
                for i in range(4):
                    a(f"v_cvt_pk_bf16_f32 v{d+i}, v{base+2*i}, v{base+2*i+1}")
                a(f"s_add_u32 s63, s60, {(2*u + hh)*65536 + tt*1024}")
                a(f"buffer_store_dwordx4 {vr(d,4)}, v1, s[{SRD2}:{SRD2+3}], s63 offen {ST}")
    a(f"s_branch {Ld}")
    a.label(Lv)
    mainloop(True)
    tile_base()
    a(f"s_add_u32 s60, s60, 0x{VF:x}")
    a("v_bfe_u32 v2, v0, 4, 1")
    a("v_lshlrev_b32 v2, 16, v2")
    a("v_lshrrev_b32 v3, 5, v0")
    a("v_lshlrev_b32 v3, 8, v3")
    a("v_and_b32 v4, 15, v0")
    a("v_lshlrev_b32 v4, 4, v4")
    a("v_add3_u32 v1, v2, v3, v4")
    a("s_nop 7")
    cnt = 0
    for tt in range(2):
        for u in range(2):
            for jj in range(2):
                base = ACC + 32 * tt + 16 * u + 8 * jj
                d = 10 + 4 * cnt
                cnt += 1
                for i in range(4):
                    a(f"v_cvt_pk_bf16_f32 v{d+i}, v{base+2*i}, v{base+2*i+1}")
                a(f"s_add_u32 s63, s60, {u*2*65536 + tt*1024 + jj*512}")
                a(f"buffer_store_dwordx4 {vr(d,4)}, v1, s[{SRD2}:{SRD2+3}], s63 offen {ST}")
    a.label(Ld)
    a(f"s_lshl_b32 s64, s{CT}, 4")
    a(f"s_add_u32 s64, s64, s{RT}")
    publish(a, 64, F_QKV, SRD2)
    stamp(a, 4)


def role_gate(a, pfx):
    task = 4
    a.c("---- gate ----")
    mk_srd(a, SRD0, P_AX, 2048 * 1024)
    mk_srd(a, SRD1, P_GW, 1024)
    mk_srd(a, SRD2, P_WS, WS_BYTES)
    a(f"s_and_b32 s60, s{task}, 7")
    a(f"s_lshl_b32 s66, s60, 3")
    a(f"s_lshr_b32 s60, s{task}, 3")
    a(f"s_add_u32 s66, s66, s60")
    a(f"s_lshl_b32 s60, s66, 5")
    a(f"s_lshl_b32 s61, s{S_W}, 2")
    a(f"s_add_u32 s65, s60, s61")
    a(f"s_lshl_b32 s61, s65, 10")
    a("v_lshlrev_b32 v1, 4, v0")
    a(f"buffer_load_dwordx4 v[4:7], v1, s[{SRD1}:{SRD1+3}], 0 offen")
    for r in range(4):
        a(f"s_add_u32 s62, s61, {r*1024}")
        a(f"buffer_load_dwordx4 v[{8+4*r}:{11+4*r}], v1, s[{SRD0}:{SRD0+3}], s62 offen")
    a("s_waitcnt vmcnt(0)")
    for r in range(4):
        a(f"v_mov_b32 v{28+r}, 0")
    for i in range(4):
        for r in range(4):
            a(f"v_dot2_f32_bf16 v{28+r}, v{8+4*r+i}, v{4+i}, v{28+r}")
    a("s_nop 2")
    for sh in ("row_shr:1", "row_shr:2", "row_shr:4", "row_shr:8"):
        for r in range(4):
            a(f"v_add_f32_dpp v{28+r}, v{28+r}, v{28+r} {sh} row_mask:0xf bank_mask:0xf bound_ctrl:0")
        a("s_nop 1")
    for r in range(4):
        a(f"v_add_f32_dpp v{28+r}, v{28+r}, v{28+r} row_bcast:15 row_mask:0xa bank_mask:0xf")
    a("s_nop 1")
    for r in range(4):
        a(f"v_add_f32_dpp v{28+r}, v{28+r}, v{28+r} row_bcast:31 row_mask:0xc bank_mask:0xf")
    a("s_nop 1")
    for r in range(4):
        a(f"v_mul_f32 v{28+r}, 0xbfb8aa3b, v{28+r}")
    for r in range(4):
        a(f"v_exp_f32 v{28+r}, v{28+r}")
    a("s_nop 0")
    for r in range(4):
        a(f"v_add_f32 v{28+r}, 1.0, v{28+r}")
    for r in range(4):
        a(f"v_rcp_f32 v{28+r}, v{28+r}")
    a("s_nop 0")
    a("s_mov_b32 s62, 0")
    a("s_mov_b32 s63, 0x80000000")
    a("s_mov_b64 exec, s[62:63]")
    a(f"s_lshl_b32 s61, s65, 2")
    a(f"s_add_u32 s61, s61, 0x{GV:x}")
    a("v_mov_b32 v1, 0")
    a(f"buffer_store_dwordx4 v[28:31], v1, s[{SRD2}:{SRD2+3}], s61 offen {ST}")
    a("s_mov_b64 exec, -1")
    publish(a, 66, F_G, SRD2)


def role_g2(a, pfx):
    RT, CG, C0, NUN, UB = 38, 39, 56, 57, 58
    XS, LB, WSb = 59, 61, 65
    SRDX = 92
    vXo, vW0, vXa0, vXa1, vWa0, vWa1 = 1, 2, 5, 9, 13, 14
    FX = [16, 36]
    FW = [20, 40]
    ACC = 56
    SLOT = 40960
    XO, GO, UO = 0, 16384, 28672
    a.c("---- G2: gate/up tile ----")
    a("s_and_b32 s62, s2, 7")
    a("s_lshr_b32 s63, s2, 3")
    a(f"s_lshr_b32 s{RT}, s62, 2")
    a(f"s_lshl_b32 s{RT}, s{RT}, 3")
    a("s_and_b32 s60, s63, 7")
    a(f"s_add_u32 s{RT}, s{RT}, s60")
    a(f"s_and_b32 s{CG}, s62, 3")
    a(f"s_lshl_b32 s{CG}, s{CG}, 2")
    a("s_lshr_b32 s60, s63, 3")
    a(f"s_add_u32 s{CG}, s{CG}, s60")
    a(f"s_mul_i32 s60, s{CG}, 96")
    a(f"s_lshl_b32 s62, s{CG}, 6")
    a("s_add_u32 s62, s62, 352")
    a(f"s_cmp_lt_u32 s{CG}, 11")
    a(f"s_cselect_b32 s{C0}, s60, s62")
    a(f"s_cselect_b32 s{NUN}, 3, 2")
    a(f"s_sub_u32 s60, s{NUN}, 1")
    a(f"s_cmp_lt_u32 s{S_W}, 4")
    a(f"s_cselect_b32 s{UB}, 0, s60")
    x_dma_voffset(a, vXo, 16, 17)
    a(f"s_add_u32 s60, s{S_W}, 8")
    a(f"s_sub_u32 s62, s{S_W}, 4")
    a(f"s_cmp_lt_u32 s{S_W}, 4")
    a("s_cselect_b32 s62, s60, s62")
    a(f"s_cselect_b32 s{SRDX}, s{P_WG}, s{P_WU}")
    a(f"s_cselect_b32 s{SRDX+1}, s{P_WG+1}, s{P_WU+1}")
    a(f"s_mov_b32 s67, {UO}")
    a(f"s_cselect_b32 s66, {GO}, s67")
    a(f"s_mov_b32 s{SRDX+2}, 0x{512*2752:x}")
    a(f"s_mov_b32 s{SRDX+3}, 0x20000")
    a(f"s_add_u32 s63, s{S_W}, 4")
    for k, isrc in enumerate((S_W, 62, 63)):
        a(f"s_lshl_b32 s60, s{isrc}, 6")
        a("v_add_u32 v16, s60, v0")
        a("v_mul_u32_u24 v17, 0xaaab, v16")
        a("v_lshrrev_b32 v17, 19, v17")
        a("v_mul_u32_u24 v18, 12, v17")
        a("v_sub_u32 v18, v16, v18")
        a("v_mul_u32_u24 v17, 2752, v17")
        a("v_lshlrev_b32 v18, 4, v18")
        a(f"v_add_u32 v{vW0+k}, v17, v18")
    a(f"s_lshl_b32 s{LB}, s{S_W}, 10")
    a("s_lshl_b32 s62, s62, 10")
    a("s_add_u32 s66, s66, s62")
    a("s_lshl_b32 s67, s63, 10")
    a(f"s_add_u32 s67, s67, {UO}")
    a(f"s_lshl_b32 s{XS}, s{RT}, 7")
    a(f"s_lshl_b32 s60, s{S_W}, 3")
    a(f"s_add_u32 s{XS}, s{XS}, s60")
    a(f"s_lshl_b32 s{XS}, s{XS}, 10")
    a(f"s_lshl_b32 s{WSb}, s{C0}, 1")
    mk_srd(a, SRD0, P_AX, 2048 * 1024)
    mk_srd(a, SRD1, P_WG, 512 * 2752)
    mk_srd(a, SRD3, P_WU, 512 * 2752)
    mk_srd(a, SRD2, P_WS, WS_BYTES)

    def sdma(j):
        so = (j % 2) * SLOT
        dma(a, vXo, SRD0, XS, j * 128, LB, so + XO)
        dma(a, vXo, SRD0, XS, j * 128 + 65536, LB, so + XO + 8192)
        dma(a, vW0, SRD1, WSb, j * 64 * 2752, LB, so + GO)
        dma(a, vW0 + 1, SRDX, WSb, j * 64 * 2752, 66, so)
        dma(a, vW0 + 2, SRD3, WSb, j * 64 * 2752, 67, so)

    stamp(a, 8)
    vm0 = VmTracker()
    sdma(0); vm0.issue("S0", 5)
    sdma(1); vm0.issue("S1", 5)
    a("v_and_b32 v16, 31, v0")
    a("v_bfe_u32 v17, v0, 1, 3")
    a("v_lshrrev_b32 v18, 5, v0")
    a("v_xor_b32 v17, v17, v18")
    a("v_lshlrev_b32 v17, 4, v17")
    a("v_lshlrev_b32 v16, 7, v16")
    a("v_add_u32 v16, v16, v17")
    a(f"s_and_b32 s60, s{S_W}, 3")
    a("s_lshl_b32 s60, s60, 12")
    a(f"v_add_u32 v{vXa0}, s60, v16")
    for s in range(1, 4):
        a(f"v_xor_b32 v{vXa0+s}, {32*s}, v{vXa0}")
    for s in range(4):
        a(f"v_add_u32 v{vXa1+s}, {SLOT}, v{vXa0+s}")
    a("v_bfe_u32 v16, v0, 2, 2")
    a("v_lshrrev_b32 v17, 5, v0")
    a("v_lshlrev_b32 v17, 3, v17")
    a("v_add_u32 v17, v17, v16")
    a("v_mul_u32_u24 v17, 192, v17")
    a("v_bfe_u32 v16, v0, 4, 1")
    a("v_lshlrev_b32 v16, 5, v16")
    a("v_and_b32 v18, 3, v0")
    a("v_lshlrev_b32 v18, 3, v18")
    a("v_add3_u32 v17, v17, v16, v18")
    a(f"s_lshl_b32 s60, s{UB}, 6")
    a(f"s_add_u32 s60, s60, {GO}")
    a(f"v_add_u32 v{vWa0}, s60, v17")
    a(f"v_add_u32 v{vWa1}, {SLOT}, v{vWa0}")

    def reads(j, s, buf, nu):
        xa = (vXa0 if j % 2 == 0 else vXa1) + s
        wa = vWa0 if j % 2 == 0 else vWa1
        L = [f"ds_read_b128 {vr(FX[buf],4)}, v{xa}"]
        for u in range(nu):
            for m in range(2):
                d = FW[buf] + 8 * u + 4 * m
                off = m * (UO - GO) + u * 64 + s * 3072
                L.append(f"ds_read_b64_tr_b16 {vr(d,2)}, v{wa} offset:{off}")
                L.append(f"ds_read_b64_tr_b16 {vr(d+2,2)}, v{wa} offset:{off + 768}")
        return L

    def mainloop(nu):
        vm = VmTracker(); vm.ops = list(vm0.ops)
        for i in range(32 * nu):
            a(f"v_mov_b32 v{ACC+i}, 0")
        a(f"s_waitcnt vmcnt({vm.wait_for(['S0'])})")
        a("s_barrier")
        stamp(a, 9)
        for l in reads(0, 0, 0, nu):
            a(l)
        buf = 0
        for j in range(8):
            for s in range(4):
                a("s_waitcnt lgkmcnt(0)")
                if s < 3:
                    rd = reads(j, s + 1, buf ^ 1, nu)
                else:
                    rd = []
                    if j < 7:
                        a(f"s_waitcnt vmcnt({vm.wait_for([f'S{j+1}'])})")
                        a("s_barrier")
                        if j + 2 < 8:
                            sdma(j + 2); vm.issue(f"S{j+2}", 5)
                        rd = reads(j + 1, 0, buf ^ 1, nu)
                mf = []
                for u in range(nu):
                    for m in range(2):
                        acc = vr(ACC + 32 * u + 16 * m, 16)
                        mf.append(f"v_mfma_f32_32x32x16_bf16 {acc}, {vr(FW[buf] + 8*u + 4*m, 4)}, {vr(FX[buf],4)}, {acc}")
                interleave(a, mf, rd)
                buf ^= 1
        stamp(a, 10)
        if OPT.get("fprio"):
            a(f"s_setprio {OPT['fprio']}")
        a(f"s_lshl_b32 s62, s{RT}, 2")
        a(f"s_and_b32 s63, s{S_W}, 3")
        a("s_add_u32 s62, s62, s63")
        a(f"s_mul_i32 s62, s62, {HSTRIDE}")
        a(f"s_lshr_b32 s60, s{C0}, 4")
        a(f"s_lshl_b32 s63, s{UB}, 1")
        a("s_add_u32 s60, s60, s63")
        a("s_add_u32 s60, s60, s62")
        a("s_lshl_b32 s60, s60, 10")
        a(f"s_add_u32 s65, s60, 0x{HF:x}")
        a("v_lshlrev_b32 v1, 4, v0")
        a("s_nop 4")
        T = 16
        for u in range(nu):
            for hh in range(2):
                g0, u0 = ACC + 32 * u + 8 * hh, ACC + 32 * u + 16 + 8 * hh
                for i in range(8):
                    a(f"v_mul_f32 v{T+i}, 0xbfb8aa3b, v{g0+i}")
                for i in range(8):
                    a(f"v_exp_f32 v{T+i}, v{T+i}")
                for i in range(8):
                    a(f"v_mul_f32 v{u0+i}, v{g0+i}, v{u0+i}")
                for i in range(8):
                    a(f"v_add_f32 v{T+i}, 1.0, v{T+i}")
                for i in range(8):
                    a(f"v_rcp_f32 v{T+i}, v{T+i}")
                a("s_nop 0")
                for i in range(8):
                    a(f"v_mul_f32 v{u0+i}, v{u0+i}, v{T+i}")
                d = 24 + 4 * (2 * u + hh)
                for i in range(4):
                    a(f"v_cvt_pk_bf16_f32 v{d+i}, v{u0+2*i}, v{u0+2*i+1}")
                a(f"s_add_u32 s63, s65, {(2*u + hh)*1024}")
                a(f"buffer_store_dwordx4 {vr(d,4)}, v1, s[{SRD2}:{SRD2+3}], s63 offen {ST}")

    Ll, Lp = f"{pfx}_light", f"{pfx}_pub"
    a(f"s_cmp_ge_u32 s{S_W}, 4")
    a(f"s_cbranch_scc1 {Ll}")
    a(f"s_cmp_eq_u32 s{NUN}, 2")
    a(f"s_cbranch_scc1 {Ll}")
    mainloop(2)
    a(f"s_branch {Lp}")
    a.label(Ll)
    mainloop(1)
    a(f"s_cmp_lg_u32 s{CG}, 15")
    a(f"s_cbranch_scc1 {Lp}")
    a(f"s_cmp_ge_u32 s{S_W}, 4")
    a(f"s_cbranch_scc1 {Lp}")
    a(f"s_lshl_b32 s62, s{RT}, 2")
    a(f"s_add_u32 s62, s62, s{S_W}")
    a(f"s_mul_i32 s62, s62, {HSTRIDE}")
    a("s_add_u32 s62, s62, 86")
    a("s_lshl_b32 s62, s62, 10")
    a(f"s_add_u32 s62, s62, 0x{HF:x}")
    for i in range(4):
        a(f"v_mov_b32 v{40+i}, 0")
    a(f"buffer_store_dwordx4 v[40:43], v1, s[{SRD2}:{SRD2+3}], s62 offen {ST}")
    a("s_add_u32 s62, s62, 1024")
    a(f"buffer_store_dwordx4 v[40:43], v1, s[{SRD2}:{SRD2+3}], s62 offen {ST}")
    a.label(Lp)
    a(f"s_lshl_b32 s64, s{RT}, 4")
    a(f"s_add_u32 s64, s64, s{CG}")
    publish(a, 64, F_H, SRD2)
    if OPT.get("fprio"):
        a("s_setprio 0")
    stamp(a, 11)


def role_g3(a, pfx):
    RT, CT, TR, KQ = 38, 39, 56, 57
    WS_, LB, AH = 59, 61, 65
    vAo, vWo, vW0, vW1 = 1, 2, 4, 6
    WF = [8, 24]
    ACCB, HR = 40, 72
    ACCA = 72
    VD = 123
    NS, N = 4, 11
    task = 4
    a.c("---- G3: down projection ----")
    a(f"s_and_b32 s63, s{task}, 7")
    a(f"s_lshr_b32 s64, s{task}, 3")
    a(f"s_lshl_b32 s{RT}, s63, 2")
    a(f"s_and_b32 s60, s64, 3")
    a(f"s_add_u32 s{RT}, s{RT}, s60")
    a(f"s_lshr_b32 s{CT}, s64, 2")
    a(f"s_and_b32 s{TR}, s{S_W}, 1")
    a(f"s_lshr_b32 s{KQ}, s{S_W}, 1")
    a(f"v_lshlrev_b32 v{vAo}, 4, v0")
    a("v_bfe_u32 v8, v0, 2, 1")
    a("v_bfe_u32 v9, v0, 4, 1")
    a("v_xor_b32 v8, v8, v9")
    a("v_lshlrev_b32 v8, 6, v8")
    a("v_and_b32 v9, 3, v0")
    a("v_lshlrev_b32 v9, 4, v9")
    a("v_lshrrev_b32 v10, 3, v0")
    a("v_lshlrev_b32 v10, 10, v10")
    a(f"v_add3_u32 v{vWo}, v8, v9, v10")
    a("v_lshrrev_b32 v8, 5, v0")
    a("v_lshlrev_b32 v8, 2, v8")
    a("v_bfe_u32 v9, v0, 2, 2")
    a("v_add_u32 v8, v8, v9")
    a("v_lshlrev_b32 v8, 7, v8")
    a("v_bfe_u32 v9, v0, 4, 1")
    a("v_lshlrev_b32 v9, 5, v9")
    a("v_and_b32 v10, 3, v0")
    a("v_lshlrev_b32 v10, 3, v10")
    a("v_add3_u32 v8, v8, v9, v10")
    a("v_bfe_u32 v9, v0, 3, 1")
    a("v_lshlrev_b32 v9, 6, v9")
    a("v_add_u32 v5, v8, v9")
    a(f"s_lshl_b32 s60, s{KQ}, 12")
    a(f"v_add_u32 v{vW0}, s60, v5")
    a(f"v_xor_b32 v{vW1}, 64, v{vW0}")
    a(f"s_lshl_b32 s60, s{RT}, 1")
    a(f"s_add_u32 s60, s60, s{TR}")
    a(f"s_mul_i32 s{AH}, s60, {HSTRIDE}")
    a(f"s_lshl_b32 s63, s{KQ}, 1")
    a(f"s_add_u32 s{AH}, s{AH}, s63")
    a(f"s_lshl_b32 s{AH}, s{AH}, 10")
    a(f"s_add_u32 s{AH}, s{AH}, 0x{HF:x}")
    a(f"s_lshl_b32 s{WS_}, s{S_W}, 13")
    a(f"s_lshl_b32 s60, s{CT}, 7")
    a(f"s_add_u32 s{WS_}, s{WS_}, s60")
    a(f"s_lshl_b32 s{LB}, s{S_W}, 10")
    mk_srd(a, SRD0, P_WD, 1376 * 1024)
    mk_srd(a, SRD1, P_WO, 512 * 1024)
    mk_srd(a, SRD2, P_WS, WS_BYTES)
    mk_srd(a, SRD3, P_OUT, 2048 * 1024)
    vm = VmTracker()

    def wdma(n):
        slot = n % NS
        dma(a, vWo, SRD0, WS_, n * 128 * 1024, LB, slot * 16384)
        dma(a, vWo, SRD0, WS_, n * 128 * 1024 + 65536, LB, slot * 16384 + 8192)
        vm.issue(f"W{n}", 2)

    def hload(n):
        for i in range(2):
            a(f"s_add_u32 s60, s{AH}, {n*8192 + i*1024}")
            a(f"buffer_load_dwordx4 {vr(HR + 8*(n % NS) + 4*i, 4)}, v{vAo}, s[{SRD2}:{SRD2+3}], s60 offen {LD}")
        vm.issue(f"H{n}", 2)

    for n in range(NS):
        wdma(n)
    a(f"s_lshr_b32 s60, s{RT}, 1")
    a(f"s_lshl_b32 s60, s60, 11")
    a(f"s_add_u32 s60, s60, 0x{F_H:x}")
    a("v_lshlrev_b32 v10, 7, v0")
    a("v_add_u32 v10, s60, v10")
    wait_flags(a, 10, 16, SRD2, sleep=4, two_stage=True)
    stamp(a, 5)
    if OPT.get("pf", 1):
        Lh = a.uid("pfh")
        a(f"s_lshl_b32 s60, s{CT}, 3")
        a(f"s_add_u32 s60, s60, s{S_W}")
        a("s_min_u32 s60, s60, 22")
        a("s_lshl_b32 s60, s60, 13")
        a(f"s_mul_i32 s62, s{RT}, {2*HSTRIDE*1024}")
        a("s_add_u32 s60, s60, s62")
        a(f"s_add_u32 s60, s60, 0x{HF:x}")
        a("v_lshlrev_b32 v8, 7, v0")
    for n in range(NS):
        hload(n)
        if n == 0 and OPT.get("pf", 1):
            pass
    if OPT.get("pf", 1):
        a(f"s_lshl_b32 s60, s{CT}, 3")
        a(f"s_add_u32 s60, s60, s{S_W}")
        a("s_min_u32 s60, s60, 22")
        a("s_lshl_b32 s60, s60, 13")
        a("s_add_u32 s60, s60, s62")
        a(f"s_add_u32 s60, s60, 0x{HF:x}")
        a(f"buffer_load_dword v{VD}, v8, s[{SRD2}:{SRD2+3}], s60 offen {LD}")
        vm.issue("PF", 1)
    for i in range(32):
        a(f"v_mov_b32 v{ACCB+i}, 0")

    def reads(n, buf):
        so = (n % NS) * 16384
        L = []
        for i in range(2):
            for tc, va in ((0, vW0), (1, vW1)):
                d = WF[buf] + 8 * i + 4 * tc
                L.append(f"ds_read_b64_tr_b16 {vr(d,2)}, v{va} offset:{so + i*2048}")
                L.append(f"ds_read_b64_tr_b16 {vr(d+2,2)}, v{va} offset:{so + i*2048 + 1024}")
        return L

    a(f"s_waitcnt vmcnt({vm.wait_for(['W0', 'H0'])})")
    a("s_barrier")
    for l in reads(0, 0):
        a(l)
    for n in range(N):
        buf = n & 1
        a("s_waitcnt lgkmcnt(0)")
        rd = []
        if n < N - 1:
            a(f"s_waitcnt vmcnt({vm.wait_for([f'W{n+1}', f'H{n+1}'])})")
            a("s_barrier")
            if n + NS < N:
                wdma(n + NS)
            rd = reads(n + 1, buf ^ 1)
        mf = []
        for i in range(2):
            for tc in range(2):
                acc = vr(ACCB + 16 * tc, 16)
                mf.append(f"v_mfma_f32_32x32x16_bf16 {acc}, {vr(WF[buf] + 8*i + 4*tc, 4)}, {vr(HR + 8*(n % NS) + 4*i, 4)}, {acc}")
        interleave(a, mf, rd)
        if n + NS < N:
            hload(n + NS)
    stamp(a, 6)
    a("s_barrier")
    for i in range(8):
        dma(a, vWo, SRD1, WS_, i * 64 * 1024, LB, i * 8192)
    a(f"s_lshr_b32 s60, s{RT}, 2")
    a(f"s_lshl_b32 s60, s60, 12")
    a(f"s_add_u32 s60, s60, 0x{F_O:x}")
    a("v_lshlrev_b32 v10, 7, v0")
    a("v_add_u32 v10, s60, v10")
    a(f"s_lshl_b32 s60, s{RT}, 8")
    a(f"s_add_u32 s60, s60, 0x{F_G - 32*128:x}")
    a("v_lshlrev_b32 v11, 7, v0")
    a("v_add_u32 v11, s60, v11")
    a("v_cmp_gt_u32 vcc, 32, v0")
    a("s_nop 1")
    a("v_cndmask_b32 v10, v11, v10, vcc")
    for i in range(32):
        a(f"v_mov_b32 v{ACCA+i}, 0")
    a(f"s_lshl_b32 s64, s{KQ}, 14")
    a("v_add_u32 v4, s64, v5")
    a("v_xor_b32 v6, 64, v4")
    wait_flags(a, 10, 34, SRD2, sleep=2, two_stage=True)
    stamp(a, 7)
    if OPT.get("fprio"):
        a(f"s_setprio {OPT['fprio']}")
    OFr = [24, 28, 32, 36, 104, 108, 112, 116]
    a(f"s_lshl_b32 s60, s{RT}, 1")
    a(f"s_add_u32 s60, s60, s{TR}")
    a("s_lshl_b32 s60, s60, 5")
    a(f"s_lshl_b32 s64, s{KQ}, 3")
    a("s_add_u32 s60, s60, s64")
    a("s_lshl_b32 s60, s60, 10")
    a(f"s_add_u32 s60, s60, 0x{OF:x}")
    for i in range(8):
        a(f"s_add_u32 s64, s60, {i*1024}")
        a(f"buffer_load_dwordx4 {vr(OFr[i],4)}, v{vAo}, s[{SRD2}:{SRD2+3}], s64 offen {LD}")
    a(f"s_lshl_b32 s60, s{RT}, 6")
    a(f"s_lshl_b32 s64, s{TR}, 5")
    a("s_add_u32 s60, s60, s64")
    a("s_lshl_b32 s60, s60, 2")
    a(f"s_add_u32 s60, s60, 0x{GV:x}")
    a("v_and_b32 v11, 31, v0")
    a("v_lshlrev_b32 v11, 2, v11")
    a(f"buffer_load_dword v120, v11, s[{SRD2}:{SRD2+3}], s60 offen {LD}")
    a("s_waitcnt vmcnt(9)")
    a("s_barrier")
    WG = [8, 16]

    def wreads(i, buf):
        L = []
        for tc, va in ((0, 4), (1, 6)):
            d = WG[buf] + 4 * tc
            L.append(f"ds_read_b64_tr_b16 {vr(d,2)}, v{va} offset:{i*2048}")
            L.append(f"ds_read_b64_tr_b16 {vr(d+2,2)}, v{va} offset:{i*2048 + 1024}")
        return L
    for l in wreads(0, 0):
        a(l)
    for i in range(8):
        a(f"s_waitcnt vmcnt({8 - i}) lgkmcnt(0)")
        mf = [f"v_mfma_f32_32x32x16_bf16 {vr(ACCA + 16*tc, 16)}, {vr(WG[i&1] + 4*tc, 4)}, {vr(OFr[i],4)}, {vr(ACCA + 16*tc, 16)}" for tc in range(2)]
        interleave(a, mf, wreads(i + 1, (i + 1) & 1) if i < 7 else [])
    a("v_and_b32 v8, 31, v0")
    a(f"s_lshl_b32 s60, s{TR}, 5")
    a("v_add_u32 v8, s60, v8")
    a("v_mul_u32_u24 v8, 272, v8")
    a("v_lshrrev_b32 v9, 5, v0")
    a("v_lshlrev_b32 v9, 4, v9")
    a(f"s_mul_i32 s60, s{KQ}, {64*272}")
    a("v_add3_u32 v8, v8, v9, s60")
    a("s_waitcnt vmcnt(0)")
    a("v_sub_f32 v121, 1.0, v120")
    for i in range(32):
        a(f"v_mul_f32 v{ACCB+i}, v121, v{ACCB+i}")
    a("s_barrier")
    for i in range(32):
        a(f"v_fmac_f32 v{ACCB+i}, v120, v{ACCA+i}")
    for tc in range(2):
        for q in range(4):
            a(f"ds_write_b128 v8, {vr(ACCB+16*tc+4*q,4)} offset:{tc*128 + q*32}")
    a(f"s_lshl_b32 s60, s{S_W}, 3")
    a("v_lshrrev_b32 v24, 3, v0")
    a("v_add_u32 v24, s60, v24")
    a("v_and_b32 v25, 7, v0")
    a("v_mul_u32_u24 v26, 272, v24")
    a("v_lshlrev_b32 v27, 5, v25")
    a("v_add_u32 v26, v26, v27")
    a("v_lshlrev_b32 v9, 10, v24")
    a("v_lshlrev_b32 v10, 4, v25")
    a("v_add_u32 v9, v9, v10")
    a(f"s_lshl_b32 s60, s{RT}, 16")
    a(f"s_lshl_b32 s63, s{CT}, 7")
    a("s_add_u32 s60, s60, s63")
    a("s_waitcnt lgkmcnt(0)")
    a("s_barrier")
    for p in range(4):
        a(f"ds_read_b128 v[{32+8*p}:{35+8*p}], v26 offset:{p*64*272}")
        a(f"ds_read_b128 v[{36+8*p}:{39+8*p}], v26 offset:{p*64*272+16}")
    a("s_waitcnt lgkmcnt(4)")
    for i in range(8):
        a(f"v_add_f32 v{32+i}, v{32+i}, v{40+i}")
    a("s_waitcnt lgkmcnt(0)")
    for i in range(8):
        a(f"v_add_f32 v{48+i}, v{48+i}, v{56+i}")
    for i in range(8):
        a(f"v_add_f32 v{32+i}, v{32+i}, v{48+i}")
    for i in range(4):
        a(f"v_cvt_pk_bf16_f32 v{12+i}, v{32+2*i}, v{33+2*i}")
    a(f"buffer_store_dwordx4 v[12:15], v9, s[{SRD3}:{SRD3+3}], s60 offen")


def prefetch_l2(a, phase):
    VD = 120
    L = a.uid("pf")
    a("s_lshr_b32 s60, s4, 3")
    a(f"s_lshl_b32 s62, s{S_W}, 5")
    a("s_add_u32 s60, s60, s62")
    a("s_and_b32 s62, s4, 7")
    if phase in (10, 11):
        xl0, nxl, ws0, nws = (3, 2, 2, 2) if phase == 10 else (5, 3, 4, 4)
        nxi = nxl * 16
        nwi = nws * 8
        a(f"s_cmp_ge_u32 s60, {nxi + nwi}")
        a(f"s_cbranch_scc1 {L}_e")
        a(f"s_cmp_ge_u32 s60, {nxi}")
        a(f"s_cbranch_scc1 {L}_w")
        a("s_lshr_b32 s62, s62, 2")
        a("s_lshl_b32 s62, s62, 10")
        a("s_and_b32 s63, s60, 15")
        a("s_lshl_b32 s63, s63, 6")
        a("s_add_u32 s62, s62, s63")
        a("s_lshl_b32 s62, s62, 10")
        a("s_lshr_b32 s60, s60, 4")
        a(f"s_add_u32 s60, s60, {xl0}")
        a("s_lshl_b32 s60, s60, 7")
        a("s_add_u32 s60, s60, s62")
        a("v_lshlrev_b32 v24, 10, v0")
        a(f"buffer_load_dword v{VD}, v24, s[{SRD0}:{SRD0+3}], s60 offen")
        a(f"s_branch {L}_e")
        a.label(f"{L}_w")
        a(f"s_sub_u32 s60, s60, {nxi}")
        a("s_lshl_b32 s60, s60, 3")
        a(f"s_add_u32 s60, s60, {64*ws0}")
        a("s_mul_i32 s60, s60, 3072")
        a("s_and_b32 s62, s62, 3")
        a("s_mul_i32 s62, s62, 768")
        a("s_add_u32 s60, s60, s62")
        a("v_lshrrev_b32 v24, 3, v0")
        a("v_mul_u32_u24 v24, 3072, v24")
        a("v_and_b32 v25, 7, v0")
        a("v_min_u32 v25, 5, v25")
        a("v_lshlrev_b32 v25, 7, v25")
        a("v_add_u32 v24, v24, v25")
        a(f"buffer_load_dword v{VD}, v24, s[{SRD1}:{SRD1+3}], s60 offen")
        a.label(f"{L}_e")
    elif phase == 2:
        a("s_cmp_ge_u32 s60, 128")
        a(f"s_cbranch_scc1 {L}_e")
        a("s_cmp_ge_u32 s60, 64")
        a(f"s_cselect_b32 s92, s{P_WU}, s{P_WG}")
        a(f"s_cselect_b32 s93, s{P_WU+1}, s{P_WG+1}")
        a(f"s_mov_b32 s94, 0x{512*2752:x}")
        a("s_mov_b32 s95, 0x20000")
        a("s_and_b32 s60, s60, 63")
        a(f"s_mul_i32 s60, s60, {8*2752}")
        a("s_and_b32 s62, s62, 3")
        a("s_mul_i32 s63, s62, 768")
        a("s_cmp_eq_u32 s62, 3")
        a("s_cselect_b32 s63, 2240, s63")
        a("s_add_u32 s60, s60, s63")
        a("v_lshrrev_b32 v24, 3, v0")
        a("v_mul_u32_u24 v24, 2752, v24")
        a("v_and_b32 v25, 7, v0")
        a("v_lshlrev_b32 v25, 7, v25")
        a("v_add_u32 v24, v24, v25")
        a(f"buffer_load_dword v{VD}, v24, s[92:95], s60 offen")
        a.label(f"{L}_e")
    elif phase == 3:
        a("s_min_u32 s60, s60, 235")
        a("s_cmp_ge_u32 s60, 172")
        a(f"s_cselect_b32 s92, s{P_WO}, s{P_WD}")
        a(f"s_cselect_b32 s93, s{P_WO+1}, s{P_WD+1}")
        a("s_cselect_b32 s62, 172, 0")
        a(f"s_mov_b32 s94, 0x{1376*1024:x}")
        a(f"s_cselect_b32 s{SRD0+2}, 0x80000, s94")
        a(f"s_mov_b32 s{SRD0}, s92")
        a(f"s_mov_b32 s{SRD0+1}, s93")
        a(f"s_mov_b32 s{SRD0+3}, 0x20000")
        a("s_sub_u32 s60, s60, s62")
        a("s_lshl_b32 s60, s60, 13")
        a("v_lshlrev_b32 v8, 7, v0")
        a(f"buffer_load_dword v{VD}, v8, s[{SRD0}:{SRD0+3}], s60 offen")

def role_attn(a, pfx, end_label):
    H, QB, QG, KH, STG = 38, 39, 56, 57, 58
    GS, LB = 59, 61
    MSK = 64
    vKa, vVa, vDo = 1, 2, 3
    SA, SB, OA, OB = 16, 32, 48, 64
    QA, QBf = 80, 84
    KB = [88, 92]
    VB = [96, 104]
    IDX = 112
    task = 4
    a.c("---- attention ----")
    if OPT.get("pf", 1):
        mk_srd(a, SRD0, P_AX, 2048 * 1024)
        mk_srd(a, SRD1, P_WQKV, 512 * 3072)
        prefetch_l2(a, 10)
        prefetch_l2(a, 11)
        if OPT.get("p2wait", 1):
            a("s_waitcnt vmcnt(0)")
        if OPT.get("only_g1") == 2:
            a("s_branch L_exit")
        prefetch_l2(a, 2)
    a(f"s_and_b32 s62, s{task}, 7")
    a(f"s_lshr_b32 s63, s{task}, 3")
    a(f"s_lshl_b32 s{H}, s62, 2")
    a(f"s_lshr_b32 s60, s63, 3")
    a(f"s_add_u32 s{H}, s{H}, s60")
    a(f"s_and_b32 s{QB}, s63, 7")
    a(f"s_and_b32 s{QG}, s{S_W}, 3")
    a(f"s_lshr_b32 s{KH}, s{S_W}, 2")
    a(f"s_lshl_b32 s{GS}, s{H}, 16")
    a(f"s_lshl_b32 s60, s{KH}, 15")
    a(f"s_add_u32 s{GS}, s{GS}, s60")
    a(f"s_lshl_b32 s60, s{QG}, 10")
    a(f"s_add_u32 s{GS}, s{GS}, s60")
    a(f"s_lshl_b32 s{LB}, s{KH}, 13")
    a(f"s_add_u32 s{LB}, s{LB}, s60")
    a(f"v_lshlrev_b32 v{vDo}, 4, v0")
    a(f"s_lshl_b32 s60, s{KH}, 13")
    a(f"v_add_u32 v{vKa}, s60, v{vDo}")
    a(f"v_lshrrev_b32 v4, 5, v0")
    a(f"v_lshlrev_b32 v4, 8, v4")
    a(f"v_and_b32 v5, 15, v0")
    a(f"v_lshlrev_b32 v5, 4, v5")
    a(f"s_add_u32 s60, s60, 4096")
    a(f"v_add3_u32 v{vVa}, v4, v5, s60")
    a(f"s_mov_b32 s{MSK}, 0x0000ffff")
    a(f"s_mov_b32 s{MSK+1}, 0x0000ffff")
    mk_srd(a, SRD2, P_WS, WS_BYTES)
    for i in range(16):
        a(f"v_mov_b32 v{OA+i}, 0")
        a(f"v_mov_b32 v{OB+i}, 0")
        a(f"v_mov_b32 v{SB+i}, 0")
    a(f"v_mov_b32 v{IDX}, 0xdddddddd")
    a("v_and_b32 v4, 16, v0")
    a("v_cmp_ne_u32 vcc, 0, v4")
    a("v_mov_b32 v5, 0x3f803f80")
    a("s_nop 1")
    for i in range(16):
        a(f"v_cndmask_b32 v{VB[0]+i}, 0, v5, vcc")
    a(f"s_lshr_b32 s60, s{H}, 3")
    a("v_lshrrev_b32 v4, 4, v0")
    a("v_lshlrev_b32 v4, 2, v4")
    a("v_add_u32 v4, 4, v4")
    a("v_cmp_gt_u32 vcc, 32, v0")
    a("s_nop 1")
    a("v_cndmask_b32 v4, 0, v4, vcc")
    a("v_add_u32 v4, s60, v4")
    a("v_and_b32 v5, 15, v0")
    a(f"s_lshl_b32 s62, s{QB}, 1")
    a("v_add_u32 v6, s62, v5")
    a("v_cndmask_b32 v5, v6, v5, vcc")
    a("v_lshl_add_u32 v4, v4, 4, v5")
    a("v_lshlrev_b32 v4, 7, v4")
    a(f"v_add_u32 v4, 0x{F_QKV:x}, v4")
    stamp(a, 1)
    wait_flags(a, 4, 34, SRD2, sleep=2, two_stage=True)
    stamp(a, 2)
    if OPT.get("prio"):
        a(f"s_setprio {OPT['prio']}")
    a(f"s_lshl_b32 s60, s{H}, 6")
    a(f"s_lshl_b32 s62, s{QB}, 3")
    a(f"s_add_u32 s60, s60, s62")
    a(f"s_lshl_b32 s62, s{QG}, 1")
    a(f"s_add_u32 s60, s60, s62")
    a(f"s_lshl_b32 s60, s60, 10")
    a(f"s_add_u32 s60, s60, 0x{QF:x}")
    a(f"s_add_u32 s62, s60, 1024")
    for st in range(1):
        dma(a, vDo, SRD2, GS, KF + st * 4096, LB, st * 16384, tmp=63, mods=LD)
        dma(a, vDo, SRD2, GS, VF + st * 4096, LB, st * 16384 + 4096, tmp=63, mods=LD)
    a(f"buffer_load_dwordx4 {vr(QA,4)}, v{vDo}, s[{SRD2}:{SRD2+3}], s60 offen {LD}")
    a(f"buffer_load_dwordx4 {vr(QBf,4)}, v{vDo}, s[{SRD2}:{SRD2+3}], s62 offen {LD}")
    for st in range(1, 3):
        dma(a, vDo, SRD2, GS, KF + st * 4096, LB, st * 16384, tmp=63, mods=LD)
        dma(a, vDo, SRD2, GS, VF + st * 4096, LB, st * 16384 + 4096, tmp=63, mods=LD)
    if OPT.get("pf", 1):
        a(f"s_and_b32 s60, s{QB}, 1")
        a("s_lshl_b32 s60, s60, 2")
        a(f"s_lshr_b32 s62, s{S_W}, 1")
        a("s_add_u32 s60, s60, s62")
        a("s_lshl_b32 s60, s60, 13")
        a(f"s_lshl_b32 s62, s{H}, 16")
        a("s_add_u32 s60, s60, s62")
        a(f"s_and_b32 s62, s{S_W}, 1")
        a(f"s_mul_i32 s62, s62, 0x{VF-KF:x}")
        a("s_add_u32 s60, s60, s62")
        a(f"s_add_u32 s60, s60, 0x{KF:x}")
        a("v_lshlrev_b32 v8, 7, v0")
        a(f"buffer_load_dword v120, v8, s[{SRD2}:{SRD2+3}], s60 offen {LD}")
    NXT, SLOT = 66, 67
    a(f"s_add_u32 s{NXT}, s{GS}, {3*4096}")
    a(f"s_mov_b32 s{SLOT}, {3*16384}")
    a(f"s_mov_b32 s{STG}, 0")
    a("s_waitcnt vmcnt(4)" if not OPT.get("pf", 1) else "s_waitcnt vmcnt(5)")
    a("s_barrier")
    stamp(a, 3)

    def kread(buf, off):
        a(f"ds_read_b128 {vr(KB[buf],4)}, v{vKa} offset:{off}")

    def vread(buf, off):
        a(f"s_mov_b64 exec, s[{MSK}:{MSK+1}]")
        a(f"ds_read_b128 {vr(VB[buf],4)}, v{vVa} offset:{off}")
        a(f"ds_read_b128 {vr(VB[buf]+4,4)}, v{vVa} offset:{off+512}")
        a("s_mov_b64 exec, -1")

    kread(0, 0)
    vread(0, 0)
    a("s_waitcnt lgkmcnt(0)")
    a(f"v_mfma_f32_32x32x16_bf16 {vr(SA,16)}, {vr(KB[0],4)}, {vr(QA,4)}, 0")
    a("s_nop 7")
    a("s_nop 7")
    Lloop = f"{pfx}_loop"
    a(".p2align 6")
    a.label(Lloop)
    for b in range(4):
        cur, nxt = b & 1, (b & 1) ^ 1
        exA = [f"v_exp_f32 v{SA+i}, v{SA+i}" for i in range(16)]
        exB = [f"v_exp_f32 v{SB+i}, v{SB+i}" for i in range(16)]
        if b == 3:
            Lt, Lj = a.uid(pfx + "_t"), a.uid(pfx + "_j")
            a(f"s_cmp_lt_u32 s{STG}, 5")
            a(f"s_cbranch_scc0 {Lt}")
            a("s_waitcnt vmcnt(2)")
            a("s_barrier")
            a(f"s_add_u32 m0, s{LB}, s{SLOT}")
            a(f"s_add_u32 s60, s{NXT}, 0x{KF:x}")
            a(f"buffer_load_dwordx4 v{vDo}, s[{SRD2}:{SRD2+3}], s60 offen {LD} lds")
            a(f"s_add_u32 m0, m0, 4096")
            a(f"s_add_u32 s60, s{NXT}, 0x{VF:x}")
            a(f"buffer_load_dwordx4 v{vDo}, s[{SRD2}:{SRD2+3}], s60 offen {LD} lds")
            a(f"s_add_u32 s{NXT}, s{NXT}, 4096")
            a(f"s_add_u32 s{SLOT}, s{SLOT}, 16384")
            a(f"s_and_b32 s{SLOT}, s{SLOT}, 0xffff")
            if OPT.get("pf", 1):
                a(f"s_cmp_lg_u32 s{STG}, 1")
                a(f"s_cbranch_scc1 {Lj}")
                prefetch_l2(a, 3)
            a(f"s_branch {Lj}")
            a.label(Lt)
            a("s_waitcnt vmcnt(0)")
            a("s_barrier")
            a.label(Lj)
            a(f"v_add_u32 v{vKa}, 16384, v{vKa}")
            a(f"v_add_u32 v{vVa}, 16384, v{vVa}")
            a(f"v_and_b32 v{vKa}, 0xffff, v{vKa}")
            a(f"v_and_b32 v{vVa}, 0xffff, v{vVa}")
            noff = 0
        else:
            noff = (b + 1) * 1024
        a(exA[0])
        kread(nxt, noff)
        a(f"v_smfmac_f32_32x32x32_bf16 {vr(OB,16)}, {vr(VB[nxt],4)}, {vr(SB,8)}, v{IDX}")
        for e in exA[1:4]:
            a(e)
        a(f"v_smfmac_f32_32x32x32_bf16 {vr(OB,16)}, {vr(VB[nxt]+4,4)}, {vr(SB+8,8)}, v{IDX}")
        for e in exA[4:7]:
            a(e)
        a(f"v_mfma_f32_32x32x16_bf16 {vr(SB,16)}, {vr(KB[cur],4)}, {vr(QBf,4)}, 0")
        vread(nxt, noff)
        for e in exA[7:16]:
            a(e)
        a("s_waitcnt lgkmcnt(2)")
        a(exB[0])
        a(f"v_smfmac_f32_32x32x32_bf16 {vr(OA,16)}, {vr(VB[cur],4)}, {vr(SA,8)}, v{IDX}")
        for e in exB[1:4]:
            a(e)
        a(f"v_smfmac_f32_32x32x32_bf16 {vr(OA,16)}, {vr(VB[cur]+4,4)}, {vr(SA+8,8)}, v{IDX}")
        for e in exB[4:7]:
            a(e)
        a(f"v_mfma_f32_32x32x16_bf16 {vr(SA,16)}, {vr(KB[nxt],4)}, {vr(QA,4)}, 0")
        for e in exB[7:16]:
            a(e)
    a(f"s_add_u32 s{STG}, s{STG}, 1")
    a(f"s_cmp_lt_u32 s{STG}, 8")
    a(f"s_cbranch_scc1 {Lloop}")
    a(f"v_smfmac_f32_32x32x32_bf16 {vr(OB,16)}, {vr(VB[1],4)}, {vr(SB,8)}, v{IDX}")
    a(f"v_smfmac_f32_32x32x32_bf16 {vr(OB,16)}, {vr(VB[1]+4,4)}, {vr(SB+8,8)}, v{IDX}")
    stamp(a, 4)
    a("s_waitcnt lgkmcnt(0)")
    a(f"s_mul_i32 s60, s{QG}, {2*64*48}")
    a("v_mul_u32_u24 v4, 48, v0")
    a("v_add_u32 v4, s60, v4")
    a("s_barrier")
    a("s_nop 7")
    a("s_nop 3")
    Lw, Lp = f"{pfx}_kh0", f"{pfx}_pub"
    a(f"s_cmp_eq_u32 s{KH}, 0")
    a(f"s_cbranch_scc1 {Lw}")
    for t, O in enumerate((OA, OB)):
        for q in range(3):
            a(f"ds_write_b128 v4, {vr(O+4*q,4)} offset:{t*3072 + q*16}")
    a("s_waitcnt lgkmcnt(0)")
    a("s_barrier")
    a(f"s_branch {Lp}")
    a.label(Lw)
    a(f"s_lshl_b32 s60, s{QB}, 3")
    a(f"s_lshl_b32 s62, s{QG}, 1")
    a(f"s_add_u32 s60, s60, s62")
    a(f"s_lshl_b32 s60, s60, 5")
    a(f"s_add_u32 s60, s60, s{H}")
    a(f"s_lshl_b32 s60, s60, 10")
    a(f"s_add_u32 s60, s60, 0x{OF:x}")
    a("s_barrier")
    for t in range(2):
        for q in range(3):
            a(f"ds_read_b128 {vr(80+12*t+4*q,4)}, v4 offset:{t*3072 + q*16}")
    a("s_waitcnt lgkmcnt(0)")
    for t, O in enumerate((OA, OB)):
        for i in range(9):
            a(f"v_add_f32 v{O+i}, v{O+i}, v{80+12*t+i}")
    for t, O in enumerate((OA, OB)):
        a(f"v_rcp_f32 v{O+8}, v{O+8}")
    a("s_nop 0")
    for t, O in enumerate((OA, OB)):
        for i in range(8):
            a(f"v_mul_f32 v{O+i}, v{O+i}, v{O+8}")
        for i in range(4):
            a(f"v_cvt_pk_bf16_f32 v{80+4*t+i}, v{O+2*i}, v{O+2*i+1}")
        a(f"s_add_u32 s62, s60, {t*32*1024}")
        a(f"buffer_store_dwordx4 {vr(80+4*t,4)}, v{vDo}, s[{SRD2}:{SRD2+3}], s62 offen {ST}")
    a.label(Lp)
    a(f"s_lshl_b32 s64, s{QB}, 5")
    a(f"s_add_u32 s64, s64, s{H}")
    publish(a, 64, F_O, SRD2)
    stamp(a, 5)
    a(f"s_or_b32 s60, s{task}, s{S_W}")
    a("s_cmp_lg_u32 s60, 0")
    a(f"s_cbranch_scc1 {end_label}")
    groups = [(F_O + i * 64 * 128, 64) for i in range(4)] + [(F_QKV + i * 64 * 128, 64) for i in range(3)]
    Lep = f"{pfx}_ep"
    a("v_lshlrev_b32 v4, 7, v0")
    a("s_mov_b32 s66, 0")
    a.label(Lep)
    for gi, (base, n) in enumerate(groups):
        a(f"s_mov_b32 s60, 0x{base:x}")
        a(f"buffer_load_dword v{8+gi}, v4, s[{SRD2}:{SRD2+3}], s60 offen sc0 sc1")
    for gi in range(4):
        a(f"s_mov_b32 s60, 0x{F_H + gi*64*128:x}")
        a(f"buffer_load_dword v{16+gi}, v4, s[{SRD2}:{SRD2+3}], s60 offen sc0 sc1")
    a("s_waitcnt vmcnt(0)")
    a("s_mov_b64 s[62:63], -1")
    for gi in range(len(groups)):
        a(f"v_cmp_eq_u32 vcc, s{S_NONCE}, v{8+gi}")
        a("s_and_b64 s[62:63], s[62:63], vcc")
    for gi in range(4):
        a(f"v_cmp_eq_u32 vcc, s{S_NONCE}, v{16+gi}")
        a("s_and_b64 s[62:63], s[62:63], vcc")
    a("s_cmp_eq_u64 s[62:63], -1")
    a(f"s_cbranch_scc1 {Lep}_ok")
    a("s_add_u32 s66, s66, 1")
    a(f"s_cmp_lt_u32 s66, {roles.SPIN_MAX}")
    a(f"s_cbranch_scc0 {Lep}_ok")
    a("s_sleep 4")
    a(f"s_branch {Lep}")
    a.label(Lep + "_ok")
    a(f"v_mov_b32 v8, s{S_NONCE}")
    a("v_mov_b32 v9, 0")
    a(f"s_mov_b32 s60, 0x{EPOCH:x}")
    a("s_mov_b64 exec, 1")
    a(f"buffer_store_dword v8, v9, s[{SRD2}:{SRD2+3}], s60 offen sc0 sc1")
    a(f"s_branch {end_label}")


def build():
    HDR = open("cdna_kernels/" + NAME + ".s.ref").read().split("; Override launch")[0]
    out = [HDR.rstrip("\n")]
    out.append(f"; @launch grid=(512,1,1) block=(512,1,1) lds=81920")
    out.append('.amdgcn_target "amdgcn-amd-amdhsa--gfx950"')
    a = Asm()
    a("s_cmp_ge_u32 s2, 512")
    a("s_cbranch_scc1 L_exit")
    if OPT.get("dbgspan"):
        a("s_memrealtime s[96:97]")
    roles.common_prologue(a)
    a("s_cmp_ge_u32 s2, 256")
    a("s_cbranch_scc1 L_attn")
    a("s_cmp_ge_u32 s2, 192")
    a("s_cbranch_scc1 L_f_gate")
    a("s_mov_b32 s4, s2")
    role_g1(a, "g1")
    if OPT.get("only_g1"):
        a("s_branch L_end")
    a("s_branch L_f_g2")
    a.label("L_f_gate")
    if OPT.get("only_g1"):
        a("s_branch L_exit")
    a("s_waitcnt lgkmcnt(0)")
    nonce_issue(a)
    a("s_sub_u32 s4, s2, 192")
    role_gate(a, "gt")
    if OPT.get("g2wait", 1):
        a("s_sub_u32 s64, s2, 192")
        a("s_and_b32 s62, s64, 7")
        a("s_lshr_b32 s63, s64, 3")
        a("s_lshr_b32 s60, s62, 2")
        a("s_lshl_b32 s60, s60, 3")
        a("s_and_b32 s64, s63, 7")
        a("s_add_u32 s60, s60, s64")
        a("s_and_b32 s64, s62, 3")
        a("s_mul_i32 s64, s64, 3")
        a("s_lshr_b32 s63, s63, 3")
        a("s_add_u32 s64, s64, s63")
        a("s_lshl_b32 s64, s64, 4")
        a("s_add_u32 s64, s64, s60")
        a("s_lshl_b32 s64, s64, 7")
        a(f"s_add_u32 s64, s64, 0x{F_QKV:x}")
        a("v_mov_b32 v10, s64")
        wait_flags(a, 10, 1, SRD2, sleep=4)
    a.label("L_f_g2")
    role_g2(a, "g2")
    a.label("L_f_g3")
    a("s_mov_b32 s4, s2")
    role_g3(a, "g3")
    a("s_branch L_end")
    a.label("L_attn")
    if OPT.get("only_g1") == 1:
        a("s_branch L_exit")
    a("s_waitcnt lgkmcnt(0)")
    nonce_issue(a)
    a("s_sub_u32 s4, s2, 256")
    role_attn(a, "at", "L_end")
    a.label("L_end")
    if OPT.get("dbgspan"):
        a("s_waitcnt vmcnt(0)")
        a("s_memrealtime s[98:99]")
        a("s_waitcnt lgkmcnt(0)")
        a("s_cmp_lg_u32 s3, 0")
        a("s_cbranch_scc1 L_exit")
        mk_srd(a, 92, P_DBG, 256)
        a("s_not_b32 s100, s96")
        a("s_mov_b64 exec, 1")
        a("v_mov_b32 v1, 0")
        a("v_mov_b32 v2, s100")
        a("buffer_atomic_umax v2, v1, s[92:95], 0 offen")
        a("v_mov_b32 v3, s98")
        a("buffer_atomic_umax v3, v1, s[92:95], 0 offen offset:4")
        a("v_mov_b32 v4, s96")
        a("buffer_atomic_umax v4, v1, s[92:95], 0 offen offset:12")
        a("s_waitcnt vmcnt(0)")
    stamp_flush(a, 0)
    a.label("L_exit")
    a("s_endpgm")
    out.append(kernel_header(NAME + "_kernel") + a.text())
    out.append(KD.format(name=NAME + "_kernel", vgpr=128, sgpr=102 if OPT.get("dbgspan") else 96, accum=128))
    return "\n".join(out)


if __name__ == "__main__":
    if "--prof" in sys.argv:
        roles.PROF = True
    for arg in sys.argv:
        if arg.startswith("--opt="):
            for kv in arg[6:].split(","):
                k, v = kv.split("=")
                OPT[k] = int(v)
    path = sys.argv[1] if len(sys.argv) > 1 and not sys.argv[1].startswith("--") else "cdna_kernels/" + NAME + ".s"
    open(path, "w").write(build())
    print("wrote", path)
```
